```python
import torch

def _softmax(x, axis=-1):
    return torch.softmax(x, dim=axis)
def _gelu(x):
    return torch.nn.functional.gelu(x, approximate="tanh")
def _silu(x):
    return torch.nn.functional.silu(x)
def _sigmoid(x):
    return torch.sigmoid(x)
def _layernorm(x, axis=-1, eps=1e-5):
    m = x.mean(dim=axis, keepdim=True)
    v = x.var(dim=axis, keepdim=True, unbiased=False)
    return (x - m) / torch.sqrt(v + eps)
def _scatter_add(tgt, idx, src, axis=0):
    return tgt.clone().index_add_(axis, idx, src)
def _segment_sum(src, seg, n):
    out = torch.zeros((n,) + src.shape[1:], dtype=src.dtype)
    return out.index_add_(0, seg, src)
def _pad(x, pw):
    flat = tuple(v for pair in reversed(pw) for v in pair)
    return torch.nn.functional.pad(x, flat)

kernel_name = 'parallel_sum__ssm_conv_s4d__moe_arch_mod__prompt'

def setup_inputs():

    _w = (lambda a: (lambda t: t.to(torch.bfloat16) if t.is_floating_point() else t)(torch.as_tensor(a)))
    def _A_setup():
        Bsz, L, D, N = 1, 2048, 1024, 128
        return {
            "u": _w((lambda *s: torch.randn(*s, dtype=torch.bfloat16) * 0.05)(Bsz, L, D)),
            "log_A_real": _w((lambda *s: torch.randn(*s, dtype=torch.bfloat16) * 3.2)(D, N) * 0.5),
            "A_imag": _w((lambda *s: torch.randn(*s, dtype=torch.bfloat16) * 0.2)(D, N) * 3.14),
            "C_real": _w((lambda *s: torch.randn(*s, dtype=torch.bfloat16) * 3.2)(D, N) / N ** 0.5),
            "C_imag": _w((lambda *s: torch.randn(*s, dtype=torch.bfloat16) * 3.2)(D, N) / N ** 0.5),
            "log_dt": _w((lambda *s: torch.randn(*s, dtype=torch.bfloat16) * 0.2)(D) * 0.5 - 4.0),
            "D_skip": _w((lambda *s: torch.randn(*s, dtype=torch.bfloat16) * 0.4)(D)),
        }
    _A_in = _A_setup()

    def _B_setup():
        B, S, D, F, C = 1, 2048, 1024, 3584, 1
        return {
            "x": _w((lambda *s: torch.randn(*s, dtype=torch.bfloat16) * 0.05)(B, S, D)),
            "w_r": _w((lambda *s: torch.randn(*s, dtype=torch.bfloat16) * 0.05)(D)),
            "w_gate": _w((lambda *s: torch.randn(*s, dtype=torch.bfloat16) * 0.05)(D, F)),
            "w_up": _w((lambda *s: torch.randn(*s, dtype=torch.bfloat16) * 0.05)(D, F)),
            "w_down": _w((lambda *s: torch.randn(*s, dtype=torch.bfloat16) * 0.05)(F, D)),
        }
    _B_in = _B_setup()

    return {
        "A_u": _A_in["u"],
        "A_log_A_real": _A_in["log_A_real"],
        "A_A_imag": _A_in["A_imag"],
        "A_C_real": _A_in["C_real"],
        "A_C_imag": _A_in["C_imag"],
        "A_log_dt": _A_in["log_dt"],
        "A_D_skip": _A_in["D_skip"],
        "B_x": _B_in["x"],
        "B_w_r": _B_in["w_r"],
        "B_w_gate": _B_in["w_gate"],
        "B_w_up": _B_in["w_up"],
        "B_w_down": _B_in["w_down"],
    }

def reference(A_u, A_log_A_real, A_A_imag, A_C_real, A_C_imag, A_log_dt, A_D_skip, B_x, B_w_r, B_w_gate, B_w_up, B_w_down):
    def _A_ref(u, log_A_real, A_imag, C_real, C_imag, log_dt, D_skip):
        L = u.shape[1]
        dt = torch.exp(log_dt)
        A = -torch.exp(log_A_real) + 1j * A_imag
        C = (C_real + 1j * C_imag) * dt[:, None]
        pos = (lambda x, dt: x.to(dt))(torch.arange(L), log_dt.dtype)
        P = torch.exp((A * dt[:, None])[:, :, None] * pos[None, None, :])
        K = 2.0 * torch.einsum("dn,dnl->dl", C, P).real
        L2 = 2 * L
        u_t = (lambda x, *d: x.permute(*d))(u, 0, 2, 1)
        Kf = (lambda x, *a, **k: torch.fft.rfft(x.float(), *a, **k))(K, L2)
        Uf = (lambda x, *a, **k: torch.fft.rfft(x.float(), *a, **k))(u_t, L2)
        y = (lambda x, *a, **k: torch.fft.irfft(x, *a, **k).to(torch.bfloat16))(Uf * Kf[None, :, :], L2)[:, :, :L]
        y = (lambda x, *d: x.permute(*d))(y, 0, 2, 1)
        return y + u * D_skip[None, None, :]

    def _B_ref(x, w_r, w_gate, w_up, w_down):
        B, S, D = x.shape
        C = 1
        r = x @ w_r
        idx = torch.argsort(-r, axis=-1)[:, :C]
        idx_e = (lambda x, n, axis: torch.repeat_interleave(x, n, dim=axis))(idx.reshape(B, C, 1), D, axis=2)
        x_sel = (lambda x, i, axis: torch.take_along_dim(x, i, dim=axis))(x, idx_e, axis=1)
        g = _silu(x_sel @ w_gate)
        u = x_sel @ w_up
        y = (g * u) @ w_down
        r_sel = _sigmoid((lambda x, i, axis: torch.take_along_dim(x, i, dim=axis))(r, idx, axis=1))
        y = y * r_sel.reshape(B, C, 1)
        b_off = (torch.arange(B) * S).reshape(B, 1)
        flat_idx = (idx + b_off).reshape(B * C)
        zero = (x * 0.0).reshape(B * S, D)
        upd = _scatter_add(zero, flat_idx, y.reshape(B * C, D), axis=0)
        return x + upd.reshape(B, S, D)

    x = A_u
    xn = _layernorm(x, axis=-1)
    return x + _A_ref(xn, A_log_A_real, A_A_imag, A_C_real, A_C_imag, A_log_dt, A_D_skip) + _B_ref(xn, B_w_r, B_w_gate, B_w_up, B_w_down)
```

```python
import re

TRANS = ("v_exp_f32", "v_log_f32", "v_rcp_f32", "v_rsq_f32", "v_sqrt_f32", "v_sin_f32", "v_cos_f32",
         "v_rcp_iflag_f32", "v_exp_f16", "v_log_f16", "v_rcp_f16", "v_rsq_f16", "v_sqrt_f16", "v_sin_f16", "v_cos_f16")

_reg_re = re.compile(r"^(-|\|)?(abs\()?([vsa])(\d+)\)?\|?$")
_rng_re = re.compile(r"^(-)?([vsa])\[(\d+):(\d+)\]$")


def parse_regs(op):
    op = op.strip()
    m = _reg_re.match(op)
    if m:
        return [m.group(3) + m.group(4)]
    m = _rng_re.match(op)
    if m:
        return [m.group(2) + str(i) for i in range(int(m.group(3)), int(m.group(4)) + 1)]
    if op in ("vcc", "vcc_lo", "vcc_hi"):
        return ["vcc"]
    if op in ("exec", "exec_lo", "exec_hi"):
        return ["exec"]
    if op == "m0":
        return ["m0"]
    return []


def split_ops(text):
    text = text.split(";")[0].strip()
    parts = text.split(None, 1)
    mn = parts[0]
    rest = parts[1] if len(parts) > 1 else ""
    ops = []
    depth = 0
    cur = ""
    for ch in rest:
        if ch in "[(":
            depth += 1
        if ch in "])":
            depth -= 1
        if ch == "," and depth == 0:
            ops.append(cur.strip())
            cur = ""
        else:
            cur += ch
    if cur.strip():
        ops.append(cur.strip())
    mods = ""
    if ops:
        last = ops[-1]
        depth = 0
        for i, ch in enumerate(last):
            if ch in "[(":
                depth += 1
            if ch in "])":
                depth -= 1
            if ch == " " and depth == 0:
                mods = last[i + 1:]
                last = last[:i]
                break
        ops[-1] = last
    return mn, ops, mods


class Ins:
    def __init__(self, text):
        self.text = text
        mn, ops, mods = split_ops(text)
        self.mn = mn
        self.ops = ops
        self.mods = mods
        base = mn.replace("_e32", "").replace("_e64", "").replace("_dpp", "").replace("_sdwa", "")
        self.base = base
        self.is_mfma = mn.startswith("v_mfma")
        self.is_dot = mn.startswith("v_dot")
        self.is_valu = mn.startswith("v_") and not self.is_mfma
        self.is_trans = base in TRANS
        self.is_ds = mn.startswith("ds_")
        self.is_vmem = mn.startswith("buffer_") or mn.startswith("global_") or mn.startswith("flat_")
        self.is_salu = mn.startswith("s_")
        self.is_dpp = "_dpp" in mn or "row_" in mods or "quad_perm" in mods or "wave_" in mods
        self.is_permlane = mn.startswith("v_permlane")
        self.is_readlane = base in ("v_readlane_b32", "v_readfirstlane_b32")
        self.wr = []
        self.rd = []
        self.srcC = []
        self.srcAB = []
        self.store_data = []
        R = [parse_regs(o) for o in ops]
        if self.is_mfma:
            self.wr = R[0]
            self.srcAB = R[1] + R[2]
            self.srcC = R[3]
            self.rd = self.srcAB + self.srcC
            self.passes = 8 if "32x32" in mn else 4
            if mn.endswith("_f32") and ("x2_f32" in mn or "x4_f32" in mn):
                raise NotImplementedError("sgemm hazards not modelled")
        elif self.is_valu:
            if self.is_permlane:
                self.wr = R[0] + R[1]
                self.rd = R[0] + R[1]
            elif base.startswith("v_cmp"):
                self.wr = R[0]
                self.rd = sum(R[1:], [])
            elif base in ("v_add_co_u32", "v_sub_co_u32", "v_addc_co_u32", "v_subb_co_u32"):
                self.wr = R[0] + R[1]
                self.rd = sum(R[2:], [])
            else:
                self.wr = R[0]
                self.rd = sum(R[1:], [])
                if base in ("v_fmac_f32", "v_dot2c_f32_bf16", "v_writelane_b32", "v_pk_fmac_f16") or self.is_dpp:
                    self.rd = self.rd + R[0]
        elif self.is_ds:
            if base.startswith("ds_read") or base.startswith("ds_bpermute") or base.startswith("ds_permute") or base.startswith("ds_swizzle") or "_rtn" in base:
                self.wr = R[0]
                self.rd = sum(R[1:], [])
            else:
                self.rd = sum(R, [])
        elif self.is_vmem:
            if "_load" in base and " lds" not in (" " + mods):
                self.wr = R[0]
                self.rd = sum(R[1:], [])
            elif "_load" in base:
                self.rd = sum(R, []) + ["m0"]
            elif base.startswith("buffer_store") or base.startswith("buffer_atomic"):
                self.rd = sum(R, [])
                if "x3" in base or "x4" in base:
                    self.store_data = R[0]
                if base.startswith("buffer_atomic") and "sc0" in mods:
                    self.wr = R[0]
            else:
                self.rd = sum(R, [])
                if "x3" in base or "x4" in base:
                    self.store_data = R[1]
        elif self.is_salu:
            if base.startswith("s_cmp") or base.startswith("s_cbranch") or base in ("s_branch", "s_waitcnt", "s_barrier", "s_nop", "s_endpgm", "s_sleep", "s_setprio"):
                self.rd = sum(R, [])
            else:
                self.wr = R[0] if R else []
                self.rd = sum(R[1:], [])
                if "saveexec" in base:
                    self.wr = self.wr + ["exec"]

    def states(self):
        if self.mn == "s_nop":
            return int(self.ops[0], 0) + 1
        return 1


def fix_hazards(lines):
    out = []
    hist = []
    pos = 0
    for ln in lines:
        t = ln.strip()
        if not t or t.startswith(";") or t.startswith(".") or t.endswith(":"):
            out.append(ln)
            continue
        I = Ins(t)
        need = 0
        for (p, P) in hist:
            d = pos - p - 1
            req = 0
            wr = set(P.wr)
            rd = set(I.rd)
            raw = wr & rd
            waw = wr & set(I.wr)
            if P.is_mfma:
                n8 = 8 if P.passes == 4 else 12
                if I.is_mfma:
                    if wr & set(I.srcAB):
                        req = max(req, n8)
                    if wr & set(I.srcC):
                        if not (I.srcC == P.wr and I.passes == P.passes):
                            req = max(req, 6 if P.passes == 4 else 10)
                    elif waw:
                        req = max(req, n8)
                elif raw or waw:
                    req = max(req, n8)
                if I.is_valu and (set(P.srcC) & set(I.wr)):
                    req = max(req, 3 if P.passes == 4 else 7)
            elif P.is_valu:
                vraw = {r for r in raw if r[0] in "va" and r != "vcc"}
                sraw = {r for r in raw if r[0] == "s" or r == "vcc"}
                if P.is_dot:
                    if (vraw or waw):
                        if I.base == P.base and not (wr & set(sum([parse_regs(o) for o in I.ops[1:3]], []))):
                            pass
                        else:
                            req = max(req, 3)
                if vraw:
                    if I.is_dpp:
                        req = max(req, 2)
                    if I.is_permlane:
                        req = max(req, 2)
                    if I.is_readlane:
                        req = max(req, 1)
                    if I.is_mfma:
                        req = max(req, 2)
                    if P.is_trans and I.is_valu and not I.is_trans:
                        req = max(req, 1)
                if sraw:
                    if I.is_valu:
                        req = max(req, 2)
                        if I.base in ("v_readlane_b32", "v_writelane_b32"):
                            req = max(req, 4)
                    if I.is_vmem:
                        req = max(req, 5)
                    if I.is_salu:
                        req = max(req, 1)
            elif P.is_vmem:
                if P.store_data and (set(P.store_data) & set(I.wr)):
                    req = max(req, 2 if I.is_valu else 1)
            elif P.is_salu:
                if "m0" in wr and "m0" in rd:
                    req = max(req, 1)
            if req > d:
                need = max(need, req - d)
        while need > 0:
            n = min(need, 16)
            out.append("  s_nop %d" % (n - 1))
            pos += n
            need -= n
        out.append(ln)
        hist.append((pos, I))
        pos += I.states()
        hist = [(p, P) for (p, P) in hist if pos - p <= 24]
    return out


class Asm:
    def __init__(self):
        self.lines = []

    def __call__(self, text):
        for l in text.strip("\n").split("\n"):
            if l.strip():
                self.lines.append("  " + l.strip() if not l.strip().endswith(":") else l.strip())

    def label(self, name):
        self.lines.append(name + ":")

    def comment(self, t):
        self.lines.append("  ; " + t)

    def text(self):
        return "\n".join(fix_hazards(self.lines)) + "\n"


class Regs:
    def __init__(self, start=0, limit=256):
        self.n = start
        self.limit = limit
        self.hi = start

    def alloc(self, cnt=1, align=1):
        if cnt >= 2 and align < 2:
            align = 2
        self.n = (self.n + align - 1) // align * align
        r = self.n
        self.n += cnt
        assert self.n <= self.limit, "out of registers: %d" % self.n
        self.hi = max(self.hi, self.n)
        return r

    def mark(self):
        return self.n

    def release(self, m):
        self.n = m


def vr(base, cnt):
    return "v[%d:%d]" % (base, base + cnt - 1)


def sr(base, cnt):
    return "s[%d:%d]" % (base, base + cnt - 1)
```

```python
from asmlib import *

L_U = 0
L_S3 = 4608
L_S5 = L_S3 + 3200
L_S7 = L_S5 + 3200
L_S9 = L_S7 + 2128
L_END = L_S9 + 2080
CH = 15360
assert L_END <= CH
L_Y = L_S3
L_MISC = 4 * CH
L_CNT_CONV = L_MISC
L_CNT_FFN = L_MISC + 4
L_IDX = L_MISC + 8
L_FFN = L_MISC + 64
K2_LDS = L_MISC + 64 + 512


def lds_sync(a, name, cnt_addr, target, vtmp, vone, stmp):
    a(f"""
s_waitcnt lgkmcnt(0)
v_mov_b32 v{vtmp}, {cnt_addr}
v_mov_b32 v{vone}, 1
s_mov_b64 exec, 1
ds_add_u32 v{vtmp}, v{vone}
s_mov_b64 exec, -1
{name}:
ds_read_b32 v{vone}, v{vtmp}
s_waitcnt lgkmcnt(0)
v_readfirstlane_b32 s{stmp}, v{vone}
s_nop 1
s_cmp_lt_u32 s{stmp}, {target}
s_cbranch_scc1 {name}
""")


def gen_k2(G):
    f32 = G.f32
    a = Asm()
    S_X, S_WS, S_OUT, S_WG, S_WU, S_WD = 8, 12, 16, 20, 24, 28
    a(f"""
s_cmp_ge_u32 s2, 256
s_cbranch_scc1 K2_END
s_load_dwordx2 s[{S_X}:{S_X+1}], s[0:1], 0
s_load_dwordx2 s[{S_WS}:{S_WS+1}], s[0:1], 112
s_load_dwordx2 s[{S_OUT}:{S_OUT+1}], s[0:1], 96
s_load_dwordx2 s[{S_WG}:{S_WG+1}], s[0:1], 72
s_load_dwordx2 s[{S_WU}:{S_WU+1}], s[0:1], 80
s_load_dwordx2 s[{S_WD}:{S_WD+1}], s[0:1], 88
s_load_dwordx2 s[32:33], s[0:1], 48
v_lshrrev_b32 v1, 6, v0
v_and_b32 v2, 63, v0
v_readfirstlane_b32 s3, v1
""")
    G.srd(a, S_X, 4 << 20)
    G.srd(a, S_WS, G.WS_SIZE)
    G.srd(a, S_OUT, 4 << 20)
    for s in (S_WG, S_WU, S_WD):
        G.srd(a, s, 7340032)
    a(f"""
s_and_b32 s4, s2, 7
s_lshr_b32 s5, s2, 3
s_lshl_b32 s6, s4, 5
s_add_u32 s6, s6, s5
s_waitcnt lgkmcnt(0)
""")
    G.stamp(a, 1, 0, 3, S_WS, 250, 60)
    a(f"""
s_cmp_ge_u32 s3, 4
s_cbranch_scc1 K2_FFN
""")
    R = Regs(4, 250)
    X = R.alloc(16, 4)
    ST = R.alloc(16, 4)
    F = {}
    deltas = list(range(1, 34, 2))
    for d in deltas:
        F[d] = R.alloc(4, 4)
    B2 = {b: R.alloc(4, 4) for b in range(3, 9)}
    ACC = [R.alloc(4, 4) for _ in range(8)]
    NG = 6
    GR = [R.alloc(4, 4) for _ in range(NG)]
    BAND = [R.alloc(4, 4) for _ in range(4)]
    B3 = {b: BAND[b - 4] for b in range(4, 8)}
    vB3 = R.alloc()
    AFIX = R.alloc(4, 4)
    vn, vq, vcb = R.alloc(), R.alloc(), R.alloc()
    vkk, vks = R.alloc(), R.alloc()
    t = [R.alloc() for _ in range(8)]
    vta = R.alloc()
    a(f"""
s_lshl_b32 s7, s6, 6
v_lshlrev_b32 v{t[0]}, 14, v0
buffer_load_dwordx4 {vr(X,4)}, v{t[0]}, s[{S_WS}:{S_WS+3}], s7 offen
buffer_load_dwordx4 {vr(X+4,4)}, v{t[0]}, s[{S_WS}:{S_WS+3}], s7 offen offset:16
buffer_load_dwordx4 {vr(X+8,4)}, v{t[0]}, s[{S_WS}:{S_WS+3}], s7 offen offset:32
buffer_load_dwordx4 {vr(X+12,4)}, v{t[0]}, s[{S_WS}:{S_WS+3}], s7 offen offset:48
v_lshlrev_b32 v{t[1]}, 6, v0
s_mov_b32 s7, {G.WS_STAT}
buffer_load_dwordx4 {vr(ST,4)}, v{t[1]}, s[{S_WS}:{S_WS+3}], s7 offen
buffer_load_dwordx4 {vr(ST+4,4)}, v{t[1]}, s[{S_WS}:{S_WS+3}], s7 offen offset:16
buffer_load_dwordx4 {vr(ST+8,4)}, v{t[1]}, s[{S_WS}:{S_WS+3}], s7 offen offset:32
buffer_load_dwordx4 {vr(ST+12,4)}, v{t[1]}, s[{S_WS}:{S_WS+3}], s7 offen offset:48
s_lshl_b32 s34, s6, 3
s_load_dwordx2 s[36:37], s[32:33], s34
v_and_b32 v{vn}, 15, v2
v_lshrrev_b32 v{vq}, 4, v2
s_lshl_b32 s35, s6, 2
s_add_u32 s35, s35, s3
s_lshl_b32 s35, s35, 11
s_add_u32 s35, s35, {G.WS_TAB}
; F base: 30 - 2b + 16q
v_lshlrev_b32 v{t[2]}, 4, v{vq}
v_lshlrev_b32 v{t[3]}, 1, v{vn}
v_sub_u32 v{t[4]}, v{t[2]}, v{t[3]}
v_add_u32 v{t[4]}, 30, v{t[4]}
""")
    for d in deltas:
        a(f"buffer_load_dwordx4 {vr(F[d],4)}, v{t[4]}, s[{S_WS}:{S_WS+3}], s35 offen offset:{32*(33-d)}")
    a(f"""
v_lshlrev_b32 v{t[5]}, 3, v{vn}
v_sub_u32 v{t[5]}, v{t[5]}, v{t[2]}
v_add_u32 v{t[5]}, 64, v{t[5]}
v_lshlrev_b32 v{vB3}, 2, v{vn}
v_sub_u32 v{vB3}, v{vB3}, v{t[2]}
v_add_u32 v{vB3}, 64, v{vB3}
v_mov_b32 v{t[7]}, 0
""")
    for b in range(3, 9):
        a(f"buffer_load_dwordx4 {vr(B2[b],4)}, v{t[5]}, s[{S_WS}:{S_WS+3}], s35 offen offset:{984-64+64*b}")
    a(f"""
buffer_load_ushort v{vkk}, v{t[7]}, s[{S_WS}:{S_WS+3}], s35 offen offset:{G.TB_T2+254}
buffer_load_dword v{vks}, v{t[7]}, s[{S_WS}:{S_WS+3}], s35 offen offset:{G.TB_KS}
""")
    NTAB = 17 + 6 + 2
    a(f"""
s_mul_i32 s38, s3, {CH}
v_mov_b32 v{GR[0]}, 0
v_mov_b32 v{GR[0]+1}, 0
v_mov_b32 v{GR[0]+2}, 0
v_mov_b32 v{GR[0]+3}, 0
v_lshlrev_b32 v{t[0]}, 4, v2
v_add_u32 v{t[0]}, s38, v{t[0]}
s_mov_b32 s40, -1
s_mov_b32 s41, 0
s_mov_b64 exec, s[40:41]
ds_write_b128 v{t[0]}, {vr(GR[0],4)}
s_mov_b64 exec, 3
ds_write_b128 v{t[0]}, {vr(GR[0],4)} offset:{L_S3}
ds_write_b128 v{t[0]}, {vr(GR[0],4)} offset:{L_S5}
ds_write_b128 v{t[0]}, {vr(GR[0],4)} offset:{L_S7}
ds_write_b128 v{t[0]}, {vr(GR[0],4)} offset:{L_S9}
s_mov_b64 exec, -1
""")
    vsh = t[0]
    a(f"v_lshlrev_b32 v{vsh}, 3, v{vq}\ns_mov_b32 s39, 0x3c00")
    for wi, w in enumerate((1, 2, 3, 4)):
        a(f"""
v_add_u32 v{t[1]}, {4-w}, v{vn}
v_lshlrev_b32 v{t[1]}, v{t[1]}, {(1 << (2*w+1)) - 1 if (1 << (2*w+1)) - 1 <= 64 else 's40'}
""" if (1 << (2 * w + 1)) - 1 <= 64 else f"""
s_mov_b32 s40, {(1 << (2*w+1)) - 1}
v_add_u32 v{t[1]}, {4-w}, v{vn}
v_lshlrev_b32 v{t[1]}, v{t[1]}, s40
""")
        a(f"v_lshrrev_b32 v{t[1]}, v{vsh}, v{t[1]}")
        for k in range(4):
            a(f"""
v_bfe_u32 v{t[2]}, v{t[1]}, {2*k}, 1
v_bfe_u32 v{t[3]}, v{t[1]}, {2*k+1}, 1
v_lshl_or_b32 v{t[2]}, v{t[3]}, 16, v{t[2]}
v_mul_u32_u24 v{BAND[wi]+k}, s39, v{t[2]}
""")
    a(f"""
v_add_u32 v{t[1]}, 12, v{vn}
v_lshlrev_b32 v{t[1]}, v{t[1]}, 3
v_lshrrev_b32 v{t[1]}, v{vsh}, v{t[1]}
""")
    for k in range(4):
        a(f"""
v_bfe_u32 v{t[2]}, v{t[1]}, {2*k}, 1
v_bfe_u32 v{t[3]}, v{t[1]}, {2*k+1}, 1
v_lshl_or_b32 v{AFIX+k}, v{t[3]}, 16, v{t[2]}
""")
    vG, vSW, vA2, vA3 = R.alloc(), R.alloc(), R.alloc(), R.alloc()
    a(f"""
v_lshlrev_b32 v{t[1]}, 5, v{vn}
v_add_u32 v{t[1]}, s38, v{t[1]}
v_lshl_add_u32 v{vG}, v{vq}, 4, v{t[1]}
v_lshl_add_u32 v{vSW}, v{vq}, 3, v{t[1]}
; r = n>>2, cc = n&3
v_lshrrev_b32 v{t[2]}, 2, v{vn}
v_and_b32 v{t[3]}, 3, v{vn}
v_and_b32 v{t[4]}, 1, v{t[2]}
v_mul_u32_u24 v{t[5]}, {L_S5-L_S3}, v{t[4]}
v_lshl_add_u32 v{t[5]}, v{vq}, 6, v{t[5]}
v_lshl_add_u32 v{t[5]}, v{t[3]}, 3, v{t[5]}
v_lshlrev_b32 v{t[6]}, 3, v{t[2]}
v_sub_u32 v{t[5]}, v{t[5]}, v{t[6]}
v_add_u32 v{t[5]}, {L_S3+32}, v{t[5]}
v_add_u32 v{vA2}, s38, v{t[5]}
;        = .. + 56 + 128q - 32(r>>1) - 16(r&1) + 8cc
v_mul_u32_u24 v{t[5]}, {L_S9-L_S7-16}, v{t[4]}
v_lshl_add_u32 v{t[5]}, v{vq}, 7, v{t[5]}
v_lshl_add_u32 v{t[5]}, v{t[3]}, 3, v{t[5]}
v_lshrrev_b32 v{t[6]}, 1, v{t[2]}
v_lshlrev_b32 v{t[6]}, 5, v{t[6]}
v_sub_u32 v{t[5]}, v{t[5]}, v{t[6]}
v_add_u32 v{t[5]}, {L_S7+56}, v{t[5]}
v_add_u32 v{vA3}, s38, v{t[5]}
v_lshlrev_b32 v{vta}, 4, v0
""")
    a(f"s_waitcnt vmcnt({NTAB})")
    XN = R.alloc(16, 4)
    W = ACC[0]
    for c in range(4):
        f = W + 8 * (c & 1)
        h = W + 16 + 4 * (c & 1)
        for k in range(4):
            a(f"v_lshlrev_b32 v{f+2*k}, 16, v{X+4*c+k}\nv_and_b32 v{f+2*k+1}, 0xffff0000, v{X+4*c+k}")
        for k in range(8):
            a(f"v_sub_f32 v{f+k}, v{f+k}, v{ST+2*k}")
        for k in range(4):
            a(f"v_cvt_pk_bf16_f32 v{h+k}, v{f+2*k}, v{f+2*k+1}")
        for k in range(4):
            a(f"v_lshlrev_b32 v{f+2*k}, 16, v{h+k}\nv_and_b32 v{f+2*k+1}, 0xffff0000, v{h+k}")
        for k in range(8):
            a(f"v_mul_f32 v{f+k}, v{f+k}, v{ST+2*k+1}")
        for k in range(4):
            a(f"v_cvt_pk_bf16_f32 v{XN+4*c+k}, v{f+2*k}, v{f+2*k+1}")
        for k in range(4):
            a(f"v_lshlrev_b32 v{f+2*k}, 16, v{XN+4*c+k}\nv_and_b32 v{f+2*k+1}, 0xffff0000, v{XN+4*c+k}")
        for k in range(4):
            a(f"v_cvt_pk_f16_f32 v{h+k}, v{f+2*k}, v{f+2*k+1}")
        a(f"ds_write_b128 v{vta}, {vr(h,4)} offset:{c*CH+512}")
    a("s_waitcnt lgkmcnt(0)\ns_barrier")
    G.stamp(a, 1, 1, 3, S_WS, 250, 60)
    for j in range(6):
        a(f"ds_read_b128 {vr(GR[j],4)}, v{vG} offset:{496+512*j}")
    jobs = []
    for j in range(6):
        for wi, (w, base) in enumerate(((1, L_S3), (2, L_S5), (3, L_S7), (4, L_S9))):
            if wi >= 2 and j >= 4:
                continue
            jobs.append((j, wi, base))
    PKS = [ST + 2 * i for i in range(8)]

    def drain(idx):
        j, wi, base = jobs[idx]
        d = ACC[idx % 8]
        p = PKS[idx % 8]
        a(f"""
v_cvt_pk_f16_f32 v{p}, v{d}, v{d+1}
v_cvt_pk_f16_f32 v{p+1}, v{d+2}, v{d+3}
ds_write_b64 v{vSW}, {vr(p,2)} offset:{base+32+512*j}
""")
    lastj = -1
    nwritten = 0
    for idx, (j, wi, base) in enumerate(jobs):
        if j != lastj:
            a(f"s_waitcnt lgkmcnt({min(15, 5-j+nwritten)})")
            lastj = j
        a(f"v_mfma_f32_16x16x32_f16 {vr(ACC[idx%8],4)}, {vr(BAND[wi],4)}, {vr(GR[j],4)}, 0")
        if idx >= 4:
            drain(idx - 4)
            nwritten += 1
    for idx in range(len(jobs) - 4, len(jobs)):
        drain(idx)
    a(f"s_waitcnt vmcnt(0)")
    for b in range(4, 8):
        a(f"buffer_load_dwordx4 {vr(B3[b],4)}, v{vB3}, s[{S_WS}:{S_WS+3}], s35 offen offset:{1364-64+64*b}")
    for k in range(4):
        a(f"v_mul_u32_u24 v{AFIX+k}, v{vkk}, v{AFIX+k}")
    F[65] = AFIX
    es = list(range(-15, 112, 2))
    first = [True] * 8
    a("s_waitcnt lgkmcnt(0)")
    PD = NG - 1
    for i in range(PD):
        a(f"ds_read_b128 {vr(GR[i%NG],4)}, v{vG} offset:{512+32*es[i]}")
    items = []
    for e in es:
        ms = []
        for mu in range(8):
            d = 16 * mu - e
            if d in F:
                ms.append((mu, F[d], True))
        items.append((("G", e), ms))
    for j in range(12):
        ms = []
        for mu in range(8):
            b = 2 * mu - j
            if 3 <= b <= 8:
                ms.append((mu, B2[b], False))
        items.append((("A2", j), ms))
    for j in range(4):
        ms = []
        for mu in range(8):
            b = mu - j
            if 4 <= b <= 7:
                ms.append((mu, B3[b], False))
        items.append((("A3", j), ms))

    def issue_read(i):
        (kind, v), _ = items[i]
        g = GR[i % NG]
        if kind == "G":
            a(f"ds_read_b128 {vr(g,4)}, v{vG} offset:{512+32*v}")
            return 1
        if kind == "A2":
            a(f"ds_read_b64_tr_b16 {vr(g,2)}, v{vA2} offset:{256*v+32}\nds_read_b64_tr_b16 {vr(g+2,2)}, v{vA2} offset:{256*v}")
            return 2
        a(f"ds_read_b64_tr_b16 {vr(g,2)}, v{vA3} offset:{512*v+64}\nds_read_b64_tr_b16 {vr(g+2,2)}, v{vA3} offset:{512*v}")
        return 2

    def nops(i):
        return 1 if items[i][0][0] == "G" else 2
    nm = 0
    for i, (key, ms) in enumerate(items):
        if i + PD < len(items):
            issue_read(i + PD)
        out = sum(nops(k) for k in range(i + 1, min(i + PD + 1, len(items))))
        if key == ("A3", 0):
            a("s_waitcnt vmcnt(0)")
        a(f"s_waitcnt lgkmcnt({out})")
        g = GR[i % NG]
        for (mu, other, near) in ms:
            c = "0" if first[mu] else vr(ACC[mu], 4)
            first[mu] = False
            if near:
                a(f"v_mfma_f32_16x16x32_f16 {vr(ACC[mu],4)}, {vr(other,4)}, {vr(g,4)}, {c}")
            else:
                a(f"v_mfma_f32_16x16x32_f16 {vr(ACC[mu],4)}, {vr(g,4)}, {vr(other,4)}, {c}")
            nm += 1
    assert nm == 126 + 4 + 40, nm
    G.stamp(a, 1, 2, 3, S_WS, 250, 60)
    for mu in range(8):
        d = ACC[mu]
        p = PKS[mu]
        for k in range(4):
            a(f"v_mul_f32 v{d+k}, v{vks}, v{d+k}")
        a(f"""
v_cvt_pk_bf16_f32 v{p}, v{d}, v{d+1}
v_cvt_pk_bf16_f32 v{p+1}, v{d+2}, v{d+3}
ds_write_b64 v{vSW}, {vr(p,2)} offset:{L_Y+512*mu}
""")
    Rf = Regs(F[1], F[1] + 68 + 24 + 32)
    XF = Rf.alloc(32, 4); NF = Rf.alloc(32, 4); TF = Rf.alloc(32, 4)
    a(f"""
s_waitcnt lgkmcnt(0)
s_lshl_b32 s40, s36, 16
s_and_b32 s41, s36, 0xffff0000
s_lshl_b32 s42, s37, 16
s_and_b32 s43, s37, 0xffff0000
v_mov_b32 v{t[0]}, {L_CNT_CONV}
v_mov_b32 v{t[1]}, 1
s_mov_b64 exec, 1
ds_add_u32 v{t[0]}, v{t[1]}
s_mov_b64 exec, -1
""")
    for c in range(4):
        for k in range(4):
            a(f"""
v_lshlrev_b32 v{XF+8*c+2*k}, 16, v{X+4*c+k}
v_and_b32 v{XF+8*c+2*k+1}, 0xffff0000, v{X+4*c+k}
v_lshlrev_b32 v{NF+8*c+2*k}, 16, v{XN+4*c+k}
v_and_b32 v{NF+8*c+2*k+1}, 0xffff0000, v{XN+4*c+k}
v_mul_f32 v{TF+8*c+2*k}, s{40+c}, v{NF+8*c+2*k}
v_mul_f32 v{TF+8*c+2*k+1}, s{40+c}, v{NF+8*c+2*k+1}
v_cvt_pk_bf16_f32 v{t[2]}, v{TF+8*c+2*k}, v{TF+8*c+2*k+1}
v_lshlrev_b32 v{TF+8*c+2*k}, 16, v{t[2]}
v_and_b32 v{TF+8*c+2*k+1}, 0xffff0000, v{t[2]}
""")
    a(f"""
K2_SPIN1:
ds_read_b32 v{t[1]}, v{t[0]}
s_waitcnt lgkmcnt(0)
v_readfirstlane_b32 s44, v{t[1]}
s_nop 1
s_cmp_lt_u32 s44, 4
s_cbranch_scc1 K2_SPIN1
""")
    Y = GR[0]
    assert Rf.n <= GR[0]
    for c in range(4):
        a(f"ds_read_b128 {vr(Y+4*c,4)}, v{vta} offset:{c*CH+L_Y}")
    a(f"""
ds_read_b32 v{t[3]}, v{t[0]} offset:8
s_mov_b32 s44, 0x00003f80
s_mov_b32 s45, 0x3f800000
s_lshl_b32 s46, s6, 3
v_lshlrev_b32 v{t[0]}, 14, v0
""")
    for c in range(4):
        a(f"s_waitcnt lgkmcnt({4-c})")
        for k in range(4):
            a(f"""
v_dot2_f32_bf16 v{TF+8*c+2*k}, v{Y+4*c+k}, s44, v{TF+8*c+2*k}
v_dot2_f32_bf16 v{TF+8*c+2*k+1}, v{Y+4*c+k}, s45, v{TF+8*c+2*k+1}
""")
    for c in range(4):
        for k in range(4):
            a(f"v_cvt_pk_bf16_f32 v{Y+4*c+k}, v{TF+8*c+2*k}, v{TF+8*c+2*k+1}")
    for c in range(4):
        for k in range(4):
            a(f"""
v_dot2_f32_bf16 v{XF+8*c+2*k}, v{Y+4*c+k}, s44, v{XF+8*c+2*k}
v_dot2_f32_bf16 v{XF+8*c+2*k+1}, v{Y+4*c+k}, s45, v{XF+8*c+2*k+1}
""")
    for c in range(4):
        for k in range(4):
            a(f"v_cvt_pk_bf16_f32 v{Y+4*c+k}, v{XF+8*c+2*k}, v{XF+8*c+2*k+1}")
    for c in range(4):
        for k in range(4):
            a(f"""
v_dot2_f32_bf16 v{NF+8*c+2*k}, v{Y+4*c+k}, s44, v{NF+8*c+2*k}
v_dot2_f32_bf16 v{NF+8*c+2*k+1}, v{Y+4*c+k}, s45, v{NF+8*c+2*k+1}
""")
    O = TF
    a(f"s_add_u32 s47, s46, 4096\ns_add_u32 s48, s46, 8192\ns_add_u32 s49, s46, 12288")
    for r in range(8):
        a(f"""
v_cvt_pk_bf16_f32 v{O+2*r}, v{NF+r}, v{NF+8+r}
v_cvt_pk_bf16_f32 v{O+2*r+1}, v{NF+16+r}, v{NF+24+r}
buffer_store_dwordx2 {vr(O+2*r,2)}, v{t[0]}, s[{S_OUT}:{S_OUT+3}], s{46+(r>>1)} offen offset:{(r&1)*2048}
""")
    a(f"""
s_cmp_lg_u32 s3, 0
s_cbranch_scc1 K2_CEND
s_waitcnt lgkmcnt(0)
v_mul_u32_u24 v{t[1]}, {CH}, v2
v_lshl_add_u32 v{t[1]}, v{t[3]}, 1, v{t[1]}
v_lshlrev_b32 v{t[2]}, 1, v2
s_add_u32 s46, s46, {G.WS_ROW}
s_mov_b64 exec, 15
ds_read_u16 v{t[4]}, v{t[1]} offset:{L_Y}
s_waitcnt lgkmcnt(0)
buffer_store_short v{t[4]}, v{t[2]}, s[{S_WS}:{S_WS+3}], s46 offen
s_mov_b64 exec, -1
K2_CEND:
""")
    G.stamp(a, 1, 3, 3, S_WS, 250, 60)
    a("s_endpgm")

    a.label("K2_FFN")
    R = Regs(4, 250)
    vt = R.alloc()
    KEY = R.alloc(16, 4)
    WG_ = R.alloc(32, 4)
    WU_ = R.alloc(32, 4)
    WD_ = R.alloc(32, 4)
    t = [R.alloc() for _ in range(8)]
    a(f"""
v_subrev_u32 v{vt}, 256, v0
v_lshlrev_b32 v{t[0]}, 4, v2
s_mov_b32 s7, {G.WS_KEY}
buffer_load_dwordx4 {vr(KEY,4)}, v{t[0]}, s[{S_WS}:{S_WS+3}], s7 offen
buffer_load_dwordx4 {vr(KEY+4,4)}, v{t[0]}, s[{S_WS}:{S_WS+3}], s7 offen offset:1024
buffer_load_dwordx4 {vr(KEY+8,4)}, v{t[0]}, s[{S_WS}:{S_WS+3}], s7 offen offset:2048
buffer_load_dwordx4 {vr(KEY+12,4)}, v{t[0]}, s[{S_WS}:{S_WS+3}], s7 offen offset:3072
s_mul_i32 s34, s4, 28
s_add_u32 s34, s34, s5
s_lshl_b32 s35, s34, 5
s_cmp_ge_u32 s5, 28
s_cselect_b32 s35, 0x70000000, s35
v_lshrrev_b32 v{t[1]}, 1, v{vt}
v_and_b32 v{t[2]}, 1, v{vt}
s_mov_b32 s36, {8*7168}
v_mul_lo_u32 v{t[3]}, v{t[1]}, s36
v_lshl_add_u32 v{t[3]}, v{t[2]}, 4, v{t[3]}
""")
    for i in range(8):
        a(f"s_add_u32 s{40+i}, s35, {7168*i}")
    for i in range(8):
        a(f"buffer_load_dwordx4 {vr(WG_+4*i,4)}, v{t[3]}, s[{S_WG}:{S_WG+3}], s{40+i} offen")
        a(f"buffer_load_dwordx4 {vr(WU_+4*i,4)}, v{t[3]}, s[{S_WU}:{S_WU+3}], s{40+i} offen")
    a(f"""
v_mov_b32 v{t[4]}, {L_MISC}
v_mov_b32 v{t[6]}, 0
v_mov_b32 v{t[7]}, 0
s_waitcnt vmcnt(16)
""")
    assert t[7] == t[6] + 1 and t[6] % 2 == 0, (t[6], t[7])
    a(f"v_max3_u32 v{KEY}, v{KEY}, v{KEY+1}, v{KEY+2}")
    for k in range(3, 15, 2):
        a(f"v_max3_u32 v{KEY}, v{KEY}, v{KEY+k}, v{KEY+k+1}")
    a(f"v_max_u32 v{KEY}, v{KEY}, v{KEY+15}")
    G.wave_reduce(a, "v_max_u32", [KEY])
    XR = KEY + 4
    SR = KEY + 8
    a(f"""
v_readlane_b32 s36, v{KEY}, 63
s_and_b32 s37, s36, 0xffff
s_sub_u32 s37, 2047, s37
s_lshl_b32 s38, s37, 11
s_lshl_b32 s39, s37, 3
s_add_u32 s39, s39, {G.WS_STAT}
v_lshlrev_b32 v{t[5]}, 4, v{t[1]}
buffer_load_dwordx4 {vr(XR,4)}, v{t[5]}, s[{S_X}:{S_X+3}], s38 offen
buffer_load_dwordx2 {vr(SR,2)}, v{t[6]}, s[{S_WS}:{S_WS+3}], s39 offen
s_lshl_b32 s48, s34, 15
s_cmp_ge_u32 s5, 28
s_cselect_b32 s48, 0x70000000, s48
v_lshlrev_b32 v{t[0]}, 3, v{vt}
""")
    for f in range(16):
        if f % 2 == 0 and f > 0:
            a(f"s_add_u32 s48, s48, 4096")
        a(f"buffer_load_dwordx2 {vr(WD_+2*f,2)}, v{t[0]}, s[{S_WD}:{S_WD+3}], s48 offen offset:{(f&1)*2048}")
    a(f"""
v_mov_b32 v{KEY+1}, s37
s_mov_b64 exec, 1
ds_write_b64 v{t[4]}, {vr(t[6],2)}
ds_write_b32 v{t[4]}, v{KEY+1} offset:8
s_mov_b64 exec, -1
s_waitcnt lgkmcnt(0)
s_barrier
""")
    G.stamp(a, 1, 1, 3, S_WS, 250, 60)
    a(f"""
s_cmp_ge_u32 s5, 28
s_cbranch_scc1 K2_END
s_waitcnt vmcnt(16)
""")
    f = R.alloc(8, 2)
    P = R.alloc(4, 4)
    LO = R.alloc(8, 2)
    HI = R.alloc(8, 2)
    for k in range(4):
        a(f"v_lshlrev_b32 v{f+2*k}, 16, v{XR+k}\nv_and_b32 v{f+2*k+1}, 0xffff0000, v{XR+k}")
    for k in range(8):
        a(f"v_sub_f32 v{f+k}, v{f+k}, v{SR}")
    for k in range(4):
        a(f"v_cvt_pk_bf16_f32 v{P+k}, v{f+2*k}, v{f+2*k+1}")
    for k in range(4):
        a(f"v_lshlrev_b32 v{f+2*k}, 16, v{P+k}\nv_and_b32 v{f+2*k+1}, 0xffff0000, v{P+k}")
    for k in range(8):
        a(f"v_mul_f32 v{f+k}, v{f+k}, v{SR+1}")
    for k in range(4):
        a(f"v_cvt_pk_bf16_f32 v{P+k}, v{f+2*k}, v{f+2*k+1}")
    for k in range(4):
        a(f"""
v_and_b32 v{LO+2*k}, 0xffff, v{P+k}
v_lshlrev_b32 v{HI+2*k}, 16, v{P+k}
v_lshrrev_b32 v{LO+2*k+1}, 16, v{P+k}
v_and_b32 v{HI+2*k+1}, 0xffff0000, v{P+k}
""")
    a(f"""
s_cmp_lg_u32 s2, 0
s_cbranch_scc1 K2_NOPUB
s_mov_b32 s38, {G.WS_ROW}
buffer_store_dwordx4 {vr(XR,4)}, v{t[5]}, s[{S_WS}:{S_WS+3}], s38 offen offset:2048
s_add_u32 s38, s38, 4096
buffer_store_dwordx4 {vr(P,4)}, v{t[5]}, s[{S_WS}:{S_WS+3}], s38 offen
v_mov_b32 v{KEY+1}, s36
buffer_store_dword v{KEY+1}, v{t[6]}, s[{S_WS}:{S_WS+3}], s38 offen offset:2048
K2_NOPUB:
""")
    AC = R.alloc(16, 4)
    for i in range(8):
        for m, Wb in ((0, WG_), (1, WU_)):
            for k in range(4):
                for h in range(2):
                    d = AC + 8 * m + 2 * k + h
                    xs = (LO if h == 0 else HI) + i
                    c = "0" if i == 0 else f"v{d}"
                    a(f"v_dot2_f32_bf16 v{d}, v{Wb+4*i+k}, v{xs}, {c}")
    for i in range(8):
        a(f"v_permlane32_swap_b32 v{AC+i}, v{AC+8+i}")
    for i in range(8):
        a(f"v_add_f32 v{AC+i}, v{AC+i}, v{AC+8+i}")
    for i in range(4):
        a(f"v_permlane16_swap_b32 v{AC+i}, v{AC+4+i}")
    for i in range(4):
        a(f"v_add_f32 v{AC+i}, v{AC+i}, v{AC+4+i}")
    for sh in (2, 4, 8):
        for i in range(4):
            a(f"v_add_f32_dpp v{AC+i}, v{AC+i}, v{AC+i} row_shr:{sh} row_mask:0xf bank_mask:0xf bound_ctrl:0")
    a(f"""
s_sub_u32 s38, s3, 4
s_lshl_b32 s38, s38, 7
v_lshrrev_b32 v{t[1]}, 5, v2
v_lshlrev_b32 v{t[1]}, 6, v{t[1]}
v_and_b32 v{t[2]}, 1, v2
v_lshl_add_u32 v{t[1]}, v{t[2]}, 5, v{t[1]}
v_bfe_u32 v{t[2]}, v2, 4, 1
v_lshl_add_u32 v{t[1]}, v{t[2]}, 4, v{t[1]}
v_add_u32 v{t[1]}, s38, v{t[1]}
s_mov_b32 s38, 0xc000c000
s_mov_b32 s39, 0xc000c000
s_mov_b64 exec, s[38:39]
ds_write_b128 v{t[1]}, {vr(AC,4)} offset:{L_FFN}
s_mov_b64 exec, -1
""")
    lds_sync(a, "K2_SPIN2", L_CNT_FFN, 4, t[2], t[3], 38)
    Gv = AC
    a(f"""
v_and_b32 v{t[1]}, 15, v2
v_lshlrev_b32 v{t[1]}, 2, v{t[1]}
""")
    for w in range(4):
        a(f"ds_read_b32 v{Gv+w}, v{t[1]} offset:{L_FFN+128*w}\nds_read_b32 v{Gv+4+w}, v{t[1]} offset:{L_FFN+128*w+64}")
    a(f"""
s_waitcnt lgkmcnt(0)
v_add_f32 v{Gv}, v{Gv}, v{Gv+1}
v_add_f32 v{Gv+2}, v{Gv+2}, v{Gv+3}
v_add_f32 v{Gv+4}, v{Gv+4}, v{Gv+5}
v_add_f32 v{Gv+6}, v{Gv+6}, v{Gv+7}
v_add_f32 v{Gv}, v{Gv}, v{Gv+2}
v_add_f32 v{Gv+4}, v{Gv+4}, v{Gv+6}
v_cvt_pk_bf16_f32 v{Gv+1}, v{Gv}, v{Gv+4}
v_lshlrev_b32 v{Gv}, 16, v{Gv+1}
v_and_b32 v{Gv+4}, 0xffff0000, v{Gv+1}
v_mul_f32 v{Gv+2}, {f32(-G.L2E)}, v{Gv}
v_exp_f32 v{Gv+2}, v{Gv+2}
v_add_f32 v{Gv+2}, 1.0, v{Gv+2}
v_rcp_f32 v{Gv+2}, v{Gv+2}
v_mul_f32 v{Gv+2}, v{Gv}, v{Gv+2}
v_cvt_pk_bf16_f32 v{Gv+2}, v{Gv+2}, v{Gv+2}
v_lshlrev_b32 v{Gv+2}, 16, v{Gv+2}
v_mul_f32 v{Gv+2}, v{Gv+2}, v{Gv+4}
v_cvt_pk_bf16_f32 v{Gv+2}, v{Gv+2}, v{Gv+2}
v_and_b32 v{Gv+2}, 0xffff, v{Gv+2}
""")
    for fi in range(16):
        a(f"v_readlane_b32 s{40+fi}, v{Gv+2}, {fi}")
    for fi in range(16):
        a(f"s_lshl_b32 s{64+fi}, s{40+fi}, 16")
    a("s_waitcnt vmcnt(0)")
    YA = AC + 8
    for fi in range(16):
        for k in range(2):
            for h in range(2):
                d = YA + 2 * k + h
                s = (40 if h == 0 else 64) + fi
                c = "0" if fi == 0 else f"v{d}"
                a(f"v_dot2_f32_bf16 v{d}, v{WD_+2*fi+k}, s{s}, {c}")
    a(f"""
s_lshl_b32 s38, s34, 12
s_add_u32 s38, s38, {G.WS_PART}
v_lshlrev_b32 v{t[0]}, 4, v{vt}
buffer_store_dwordx4 {vr(YA,4)}, v{t[0]}, s[{S_WS}:{S_WS+3}], s38 offen
""")
    G.stamp(a, 1, 3, 3, S_WS, 250, 84)
    a.label("K2_END")
    a("s_endpgm")
    return a, K2_LDS


def gen_k3(G):
    f32 = G.f32
    a = Asm()
    S_WS, S_OUT, S_DS = 12, 16, 20
    a(f"""
s_cmp_ge_u32 s2, 32
s_cbranch_scc1 K3_END
s_load_dwordx2 s[{S_WS}:{S_WS+1}], s[0:1], 112
s_load_dwordx2 s[{S_OUT}:{S_OUT+1}], s[0:1], 96
s_load_dwordx2 s[{S_DS}:{S_DS+1}], s[0:1], 48
v_lshrrev_b32 v1, 6, v0
v_readfirstlane_b32 s3, v1
""")
    G.srd(a, S_WS, G.WS_SIZE)
    G.srd(a, S_OUT, 4 << 20)
    G.srd(a, S_DS, 2048)
    a(f"""
s_waitcnt lgkmcnt(0)
""")
    G.stamp(a, 2, 0, 3, S_WS, 60, 60)
    a(f"""
v_and_b32 v2, 7, v0
v_lshrrev_b32 v3, 3, v0
v_lshlrev_b32 v4, 12, v3
v_lshl_add_u32 v4, v2, 4, v4
s_lshl_b32 s4, s2, 7
s_add_u32 s4, s4, {G.WS_PART}
""")
    for k in range(7):
        a(f"buffer_load_dwordx4 {vr(8+4*k,4)}, v4, s[{S_WS}:{S_WS+3}], s4 offen")
        if k < 6:
            a(f"s_add_u32 s4, s4, {32*4096}")
    a(f"""
v_and_b32 v5, 31, v0
v_lshlrev_b32 v5, 1, v5
s_lshl_b32 s5, s2, 6
s_add_u32 s6, s5, {G.WS_ROW}
s_add_u32 s7, s6, 4096
v_mov_b32 v6, 0
buffer_load_ushort v40, v5, s[{S_WS}:{S_WS+3}], s6 offen
buffer_load_ushort v41, v5, s[{S_WS}:{S_WS+3}], s6 offen offset:2048
buffer_load_ushort v42, v5, s[{S_WS}:{S_WS+3}], s7 offen
buffer_load_ushort v43, v5, s[{S_DS}:{S_DS+3}], s5 offen
s_mov_b32 s7, {G.WS_ROW+6144}
buffer_load_dword v44, v6, s[{S_WS}:{S_WS+3}], s7 offen
""")
    for k in range(1, 7):
        a(f"s_waitcnt vmcnt({5+6-k})")
        for i in range(4):
            a(f"v_add_f32 v{8+i}, v{8+i}, v{8+4*k+i}")
    a(f"""
v_lshlrev_b32 v7, 4, v0
ds_write_b128 v7, v[8:11]
s_waitcnt lgkmcnt(0)
s_barrier
s_cmp_lg_u32 s3, 0
s_cbranch_scc1 K3_END
v_and_b32 v7, 31, v0
v_lshlrev_b32 v7, 2, v7
v_lshrrev_b32 v1, 5, v0
v_lshl_add_u32 v7, v1, 11, v7
""")
    for k in range(16):
        a(f"ds_read_b32 v{8+k}, v7 offset:{128*k}")
    a("s_waitcnt lgkmcnt(0)")
    for n in (8, 4, 2, 1):
        for k in range(n):
            a(f"v_add_f32 v{8+k}, v{8+k}, v{8+k+n}")
    a(f"""
v_mov_b32 v9, v8
v_permlane32_swap_b32 v8, v9
v_add_f32 v8, v8, v9
s_waitcnt vmcnt(0)
v_readfirstlane_b32 s8, v44
s_and_b32 s9, s8, 0xffff
s_sub_u32 s9, 2047, s9
s_lshr_b32 s8, s8, 16
s_xor_b32 s10, s8, 0xffff
s_and_b32 s11, s8, 0x7fff
s_cmp_ge_u32 s8, 0x8000
s_cselect_b32 s8, s11, s10
s_lshl_b32 s8, s8, 16
v_mov_b32 v10, s8
v_mul_f32 v10, {f32(-G.L2E)}, v10
v_exp_f32 v10, v10
v_add_f32 v10, 1.0, v10
v_rcp_f32 v10, v10
v_cvt_pk_bf16_f32 v11, v8, v10
v_lshlrev_b32 v8, 16, v11
v_and_b32 v10, 0xffff0000, v11
v_mul_f32 v8, v8, v10
v_lshlrev_b32 v40, 16, v40
v_lshlrev_b32 v41, 16, v41
v_lshlrev_b32 v42, 16, v42
v_lshlrev_b32 v43, 16, v43
v_mul_f32 v12, v42, v43
v_cvt_pk_bf16_f32 v11, v8, v12
v_lshlrev_b32 v8, 16, v11
v_and_b32 v12, 0xffff0000, v11
; v8 = yy, v12 = t1
v_add_f32 v8, v42, v8
v_add_f32 v12, v40, v12
v_cvt_pk_bf16_f32 v11, v8, v12
v_lshlrev_b32 v8, 16, v11
v_and_b32 v12, 0xffff0000, v11
; v8 = o2, v12 = a
v_add_f32 v12, v41, v12
v_cvt_pk_bf16_f32 v11, v12, v12
v_lshlrev_b32 v12, 16, v11
v_add_f32 v12, v12, v8
v_cvt_pk_bf16_f32 v11, v12, v12
s_lshl_b32 s9, s9, 11
s_add_u32 s9, s9, s5
s_mov_b32 s10, -1
s_mov_b32 s11, 0
s_mov_b64 exec, s[10:11]
buffer_store_short v11, v5, s[{S_OUT}:{S_OUT+3}], s9 offen
s_mov_b64 exec, -1
""")
    G.stamp(a, 2, 1, 3, S_WS, 60, 60)
    a.label("K3_END")
    a("s_endpgm")
    return a
```

```python
import sys, struct, math
import numpy as np
from asmlib import *

OUT = sys.argv[1] if len(sys.argv) > 1 else "parallel_sum__ssm_conv_s4d__moe_arch_mod__prompt.s"
STAMP = "--stamp" in sys.argv
PREF = 0
for a_ in sys.argv:
    if a_.startswith("--pref="):
        PREF = int(a_.split("=")[1])


def f32(x):
    return "0x%08x" % struct.unpack("<I", struct.pack("<f", x))[0]


L2E = math.log2(math.e)
L2E_HI = float(np.float32(math.floor(L2E * 2 ** 15) / 2 ** 15))
L2E_LO = float(np.float32(L2E - L2E_HI))
INV2PI = 1.0 / (2 * math.pi)
INV2PI_HI = float(np.float32(INV2PI))
INV2PI_LO = float(np.float32(INV2PI - INV2PI_HI))

WS_XT = 0
WS_TAB = 4 << 20
WS_STAT = 6 << 20
WS_KEY = (6 << 20) + (64 << 10)
WS_PART = 7 << 20
WS_ROW = 8 << 20
WS_STAMP = 9 << 20
WS_SIZE = 16 << 20
TB_T2 = 1248
TB_T3 = 1632
TB_KS = 1888

FMT = "0x20000"


def srd(a, s, nbytes):
    a(f"s_mov_b32 s{s+2}, {nbytes}\ns_mov_b32 s{s+3}, {FMT}")


def wave_reduce(a, op, regs, zero_ok=True):
    for sh in (1, 2, 4, 8):
        for r in regs:
            a(f"{op}_dpp v{r}, v{r}, v{r} row_shr:{sh} row_mask:0xf bank_mask:0xf bound_ctrl:0")
    for r in regs:
        a(f"{op}_dpp v{r}, v{r}, v{r} row_bcast:15 row_mask:0xa bank_mask:0xf")
    for r in regs:
        a(f"{op}_dpp v{r}, v{r}, v{r} row_bcast:31 row_mask:0xc bank_mask:0xf")


def stamp(a, kid, slot, swave, sws, tmpv, stmp):
    if not STAMP:
        return
    a(f"""
s_memrealtime s[{stmp}:{stmp+1}]
s_lshl_b32 s{stmp+2}, s2, 8
s_lshl_b32 s{stmp+3}, s{swave}, 5
s_add_u32 s{stmp+2}, s{stmp+2}, s{stmp+3}
s_add_u32 s{stmp+2}, s{stmp+2}, {WS_STAMP + kid*0x40000 + slot*4}
s_waitcnt lgkmcnt(0)
v_mov_b32 v{tmpv}, s{stmp}
v_mov_b32 v{tmpv+1}, 0
buffer_store_dword v{tmpv}, v{tmpv+1}, s[{sws}:{sws+3}], s{stmp+2} offen
""")


def exp_bf16(a, dst, x, t0, t1, s_lo):
    a(f"""
v_mul_f32 v{t0}, {f32(L2E_HI)}, v{x}
v_rndne_f32 v{t1}, v{t0}
v_sub_f32 v{t0}, v{t0}, v{t1}
v_fma_f32 v{t0}, v{x}, s{s_lo}, v{t0}
v_exp_f32 v{t0}, v{t0}
v_cvt_i32_f32 v{t1}, v{t1}
v_ldexp_f32 v{dst}, v{t0}, v{t1}
""")


KG_ROWB = 528
KG_WAVEB = 58 * KG_ROWB
K1_LDS = 4 * KG_WAVEB


def gen_k1():
    a = Asm()
    S_X, S_WS, S_WR, S_LA, S_AI, S_CR, S_CI, S_DT, S_WG, S_WU, S_WD = 8, 12, 16, 20, 24, 28, 32, 36, 40, 44, 48
    a(f"""
s_cmp_ge_u32 s2, 256
s_cbranch_scc1 K1_END
s_load_dwordx2 s[{S_X}:{S_X+1}], s[0:1], 0
s_load_dwordx2 s[{S_WS}:{S_WS+1}], s[0:1], 112
s_load_dwordx2 s[{S_WR}:{S_WR+1}], s[0:1], 64
s_load_dwordx2 s[{S_LA}:{S_LA+1}], s[0:1], 8
s_load_dwordx2 s[{S_AI}:{S_AI+1}], s[0:1], 16
s_load_dwordx2 s[{S_CR}:{S_CR+1}], s[0:1], 24
s_load_dwordx2 s[{S_CI}:{S_CI+1}], s[0:1], 32
s_load_dwordx2 s[{S_DT}:{S_DT+1}], s[0:1], 40
s_load_dwordx2 s[{S_WG}:{S_WG+1}], s[0:1], 72
s_load_dwordx2 s[{S_WU}:{S_WU+1}], s[0:1], 80
s_load_dwordx2 s[{S_WD}:{S_WD+1}], s[0:1], 88
v_lshrrev_b32 v1, 6, v0
v_and_b32 v2, 63, v0
v_readfirstlane_b32 s3, v1
""")
    srd(a, S_X, 4 << 20)
    srd(a, S_WS, WS_SIZE)
    srd(a, S_WR, 2048)
    for s in (S_LA, S_AI, S_CR, S_CI):
        srd(a, s, 262144)
    srd(a, S_DT, 2048)
    for s in (S_WG, S_WU, S_WD):
        srd(a, s, 7340032)
    a(f"""
s_waitcnt lgkmcnt(0)
""")
    stamp(a, 0, 0, 3, S_WS, 250, 60)
    a(f"""
s_cmp_ge_u32 s3, 4
s_cbranch_scc1 K1_KGEN
""")

    def prefetch(a, wave_lo):
        if PREF == 0:
            return
        vt, va, vb, vd = 240, 241, 242, 243
        a(f"""
s_and_b32 s56, s2, 7
s_lshr_b32 s57, s2, 3
v_cmp_le_u32 vcc, 224, v0
v_subrev_u32 v{vt}, 224, v0
v_cndmask_b32 v{vt}, v0, v{vt}, vcc
v_mul_u32_u24 v{va}, 9363, v{vt}
v_lshrrev_b32 v{va}, 16, v{va}
v_mul_u32_u24 v{vb}, 7, v{va}
v_sub_u32 v{vb}, v{vt}, v{vb}
v_mul_u32_u24 v{va}, 7168, v{va}
v_lshl_add_u32 v{va}, v{vb}, 7, v{va}
s_mul_i32 s58, s57, {32*7168}
s_mul_i32 s59, s56, 896
s_add_u32 s58, s58, s59
v_cmp_gt_u32 vcc, 448, v0
v_mov_b32 v{vd}, 0x7ffffff0
v_cndmask_b32 v{va}, v{vd}, v{va}, vcc
v_cmp_gt_u32 vcc, 224, v0
v_cndmask_b32 v{vb}, v{vd}, v{va}, vcc
v_cndmask_b32 v{va}, v{va}, v{vd}, vcc
""")
        if PREF & 1:
            a(f"buffer_load_dword v244, v{vb}, s[{S_WG}:{S_WG+3}], s58 offen")
        if PREF & 2:
            a(f"buffer_load_dword v245, v{va}, s[{S_WU}:{S_WU+3}], s58 offen")
        if PREF & 4:
            a(f"""
s_mul_i32 s58, s56, 448
s_mul_i32 s59, s57, 14
s_add_u32 s58, s58, s59
s_lshl_b32 s58, s58, 11
v_lshlrev_b32 v{va}, 7, v0
v_cmp_gt_u32 vcc, 224, v0
v_cndmask_b32 v{va}, v{vd}, v{va}, vcc
buffer_load_dword v246, v{va}, s[{S_WD}:{S_WD+3}], s58 offen
""")

    NPF = bin(PREF).count("1")
    XA0, XB0, XA1, XB1, WRA, WRB = 4, 8, 12, 16, 20, 24
    a(f"""
s_lshl_b32 s4, s2, 3
s_lshl_b32 s5, s3, 1
s_add_u32 s4, s4, s5
s_lshl_b32 s5, s4, 11
v_lshlrev_b32 v3, 4, v2
buffer_load_dwordx4 {vr(XA0,4)}, v3, s[{S_X}:{S_X+3}], s5 offen
buffer_load_dwordx4 {vr(XB0,4)}, v3, s[{S_X}:{S_X+3}], s5 offen offset:1024
buffer_load_dwordx4 {vr(XA1,4)}, v3, s[{S_X}:{S_X+3}], s5 offen offset:2048
buffer_load_dwordx4 {vr(XB1,4)}, v3, s[{S_X}:{S_X+3}], s5 offen offset:3072
buffer_load_dwordx4 {vr(WRA,4)}, v3, s[{S_WR}:{S_WR+3}], 0 offen
buffer_load_dwordx4 {vr(WRB,4)}, v3, s[{S_WR}:{S_WR+3}], 0 offen offset:1024
""")
    prefetch(a, 0)
    F = [32, 48]
    a(f"s_waitcnt vmcnt({2+NPF})")
    for row, src in ((0, 4), (1, 12)):
        for k in range(8):
            a(f"v_lshlrev_b32 v{F[row]+2*k}, 16, v{src+k}\nv_and_b32 v{F[row]+2*k+1}, 0xffff0000, v{src+k}")
    SUM = [64, 65]
    T = [66, 74]
    for lvl in range(1):
        for row in (0, 1):
            for k in range(8):
                a(f"v_add_f32 v{T[row]+k}, v{F[row]+2*k}, v{F[row]+2*k+1}")
    for n in (4, 2, 1):
        for row in (0, 1):
            for k in range(n):
                dst = SUM[row] if n == 1 else T[row] + k
                a(f"v_add_f32 v{dst}, v{T[row]+k}, v{T[row]+k+n}")
    wave_reduce(a, "v_add_f32", SUM)
    a(f"v_mul_f32 v{SUM[0]}, {f32(1.0/1024)}, v{SUM[0]}\nv_mul_f32 v{SUM[1]}, {f32(1.0/1024)}, v{SUM[1]}")
    a(f"v_readlane_b32 s6, v{SUM[0]}, 63\nv_readlane_b32 s7, v{SUM[1]}, 63")
    SQ = [66, 74]
    D_ = [82, 83]
    for k in range(16):
        for row in (0, 1):
            a(f"v_subrev_f32 v{D_[row]}, s{6+row}, v{F[row]+k}")
            if k < 4:
                a(f"v_mul_f32 v{SQ[row]+k}, v{D_[row]}, v{D_[row]}")
            else:
                a(f"v_fmac_f32 v{SQ[row]+(k&3)}, v{D_[row]}, v{D_[row]}")
    for row in (0, 1):
        a(f"v_add_f32 v{SQ[row]}, v{SQ[row]}, v{SQ[row]+1}\nv_add_f32 v{SQ[row]+2}, v{SQ[row]+2}, v{SQ[row]+3}")
    for row in (0, 1):
        a(f"v_add_f32 v{SUM[row]}, v{SQ[row]}, v{SQ[row]+2}")
    wave_reduce(a, "v_add_f32", SUM)
    a(f"""
v_mul_f32 v64, {f32(1.0/1024)}, v64
v_mul_f32 v65, {f32(1.0/1024)}, v65
v_cvt_pk_bf16_f32 v66, v64, v65
v_lshlrev_b32 v64, 16, v66
v_and_b32 v65, 0xffff0000, v66
v_add_f32 v64, {f32(1e-5)}, v64
v_add_f32 v65, {f32(1e-5)}, v65
v_cvt_pk_bf16_f32 v66, v64, v65
v_lshlrev_b32 v64, 16, v66
v_and_b32 v65, 0xffff0000, v66
v_sqrt_f32 v64, v64
v_sqrt_f32 v65, v65
v_cvt_pk_bf16_f32 v66, v64, v65
v_lshlrev_b32 v64, 16, v66
v_and_b32 v65, 0xffff0000, v66
v_rcp_f32 v64, v64
v_rcp_f32 v65, v65
v_mov_b32 v67, s6
v_mov_b32 v68, s7
v_cvt_pk_bf16_f32 v66, v67, v68
v_readlane_b32 s52, v64, 63
v_readlane_b32 s53, v65, 63
v_readfirstlane_b32 s54, v66
s_lshl_b32 s6, s54, 16
s_and_b32 s7, s54, 0xffff0000
""")
    a(f"s_waitcnt vmcnt({NPF})")
    RA = [64, 65]
    a("v_mov_b32 v64, 0\nv_mov_b32 v65, 0")
    for k in range(8):
        for row in (0, 1):
            f0, f1 = F[row] + 2 * k, F[row] + 2 * k + 1
            t = 66 + row
            a(f"""
v_subrev_f32 v{f0}, s{6+row}, v{f0}
v_subrev_f32 v{f1}, s{6+row}, v{f1}
v_cvt_pk_bf16_f32 v{t}, v{f0}, v{f1}
v_lshlrev_b32 v{f0}, 16, v{t}
v_and_b32 v{f1}, 0xffff0000, v{t}
v_mul_f32 v{f0}, s{52+row}, v{f0}
v_mul_f32 v{f1}, s{52+row}, v{f1}
v_cvt_pk_bf16_f32 v{t}, v{f0}, v{f1}
v_dot2_f32_bf16 v{RA[row]}, v{t}, v{WRA+k}, v{RA[row]}
""")
    wave_reduce(a, "v_add_f32", RA)
    a(f"""
v_cvt_pk_bf16_f32 v66, v64, v65
v_readlane_b32 s54, v66, 63
s_and_b32 s55, s54, 0xffff
s_lshr_b32 s54, s54, 16
s_xor_b32 s56, s55, 0xffff
s_or_b32 s57, s55, 0x8000
s_cmp_ge_u32 s55, 0x8000
s_cselect_b32 s55, s56, s57
s_xor_b32 s56, s54, 0xffff
s_or_b32 s57, s54, 0x8000
s_cmp_ge_u32 s54, 0x8000
s_cselect_b32 s54, s56, s57
s_lshl_b32 s55, s55, 16
s_lshl_b32 s54, s54, 16
s_sub_u32 s56, 2047, s4
s_or_b32 s55, s55, s56
s_sub_u32 s56, 2046, s4
s_or_b32 s54, s54, s56
s_max_u32 s54, s54, s55
v_mov_b32 v4, s6
v_mov_b32 v5, s52
v_mov_b32 v6, s7
v_mov_b32 v7, s53
v_mov_b32 v8, s54
v_mov_b32 v9, 0
s_lshl_b32 s5, s4, 3
s_add_u32 s5, s5, {WS_STAT}
s_lshl_b32 s55, s4, 1
s_add_u32 s55, s55, {WS_KEY}
s_mov_b64 exec, 1
buffer_store_dwordx4 v[4:7], v9, s[{S_WS}:{S_WS+3}], s5 offen
buffer_store_dword v8, v9, s[{S_WS}:{S_WS+3}], s55 offen
""")
    stamp(a, 0, 1, 3, S_WS, 250, 60)
    a("s_endpgm")

    a.label("K1_KGEN")
    R = Regs(4, 240)
    a(f"""
s_sub_u32 s3, s3, 4
s_and_b32 s4, s2, 7
s_lshl_b32 s4, s4, 5
s_lshr_b32 s5, s2, 3
s_add_u32 s4, s4, s5
s_lshl_b32 s4, s4, 2
s_add_u32 s4, s4, s3
s_lshl_b32 s5, s4, 8
s_lshl_b32 s6, s4, 1
v_lshlrev_b32 v3, 2, v2
""")
    pLA, pAI, pCR, pCI, pDT = [R.alloc() for _ in range(5)]
    vz = R.alloc()
    a(f"""
v_mov_b32 v{vz}, 0
buffer_load_dword v{pLA}, v3, s[{S_LA}:{S_LA+3}], s5 offen
buffer_load_dword v{pAI}, v3, s[{S_AI}:{S_AI+3}], s5 offen
buffer_load_dword v{pCR}, v3, s[{S_CR}:{S_CR+3}], s5 offen
buffer_load_dword v{pCI}, v3, s[{S_CI}:{S_CI+3}], s5 offen
buffer_load_ushort v{pDT}, v{vz}, s[{S_DT}:{S_DT+3}], s6 offen
""")
    XR = R.alloc(16, 2)
    vxo = R.alloc()
    a(f"""
s_lshl_b32 s7, s2, 14
s_lshl_b32 s52, s3, 9
s_add_u32 s7, s7, s52
s_add_u32 s52, s7, 4096
s_add_u32 s53, s7, 8192
s_add_u32 s54, s7, 12288
v_lshlrev_b32 v{vxo}, 3, v2
""")
    for r in range(8):
        so = ["s7", "s52", "s53", "s54"][r >> 1]
        a(f"buffer_load_dwordx2 {vr(XR+2*r,2)}, v{vxo}, s[{S_X}:{S_X+3}], {so} offen offset:{(r&1)*2048}")
    prefetch(a, 4)
    a(f"""
s_mov_b32 s55, {f32(L2E_LO)}
s_mov_b32 s52, 0x05040100
s_mov_b32 s53, 0x07060302
""")
    a(f"s_waitcnt vmcnt({8+NPF})")
    t = [R.alloc() for _ in range(8)]
    dt = R.alloc()
    la = R.alloc(2, 2); ai = R.alloc(2, 2); cr = R.alloc(2, 2); ci = R.alloc(2, 2)
    for (p, d) in ((pLA, la), (pAI, ai), (pCR, cr), (pCI, ci)):
        a(f"v_lshlrev_b32 v{d}, 16, v{p}\nv_and_b32 v{d+1}, 0xffff0000, v{p}")
    a(f"v_lshlrev_b32 v{dt}, 16, v{pDT}")
    a(f"""
s_mov_b32 s56, {f32(-128.0)}
v_mov_b32 v{t[7]}, {f32(128.0)}
v_med3_f32 v{dt}, v{dt}, s56, v{t[7]}
v_med3_f32 v{la}, v{la}, s56, v{t[7]}
v_med3_f32 v{la+1}, v{la+1}, s56, v{t[7]}
""")
    exp_bf16(a, dt, dt, t[0], t[1], 55)
    exp_bf16(a, la, la, t[2], t[3], 55)
    exp_bf16(a, la + 1, la + 1, t[4], t[5], 55)
    a(f"""
v_cvt_pk_bf16_f32 v{t[0]}, v{dt}, v{dt}
v_cvt_pk_bf16_f32 v{t[1]}, v{la}, v{la+1}
v_lshlrev_b32 v{dt}, 16, v{t[0]}
v_lshlrev_b32 v{la}, 16, v{t[1]}
v_and_b32 v{la+1}, 0xffff0000, v{t[1]}
""")
    for k in (0, 1):
        a(f"""
v_mul_f32 v{la+k}, v{la+k}, v{dt}
v_mul_f32 v{ai+k}, v{ai+k}, v{dt}
v_mul_f32 v{cr+k}, v{cr+k}, v{dt}
v_mul_f32 v{ci+k}, v{ci+k}, v{dt}
v_mul_f32 v{la+k}, {f32(-L2E)}, v{la+k}
""")
    mx = R.alloc()
    a(f"""
v_max_f32 v{mx}, |v{cr}|, |v{cr+1}|
v_max3_f32 v{mx}, |v{ci}|, |v{ci+1}|, v{mx}
""")
    wave_reduce(a, "v_max_f32", [mx])
    wh = R.alloc(2, 2); wl = R.alloc(2, 2)
    a(f"s_mov_b32 s56, {f32(INV2PI_HI)}\ns_mov_b32 s57, {f32(INV2PI_LO)}")
    for k in (0, 1):
        a(f"""
v_mul_f32 v{wh+k}, s56, v{ai+k}
v_fma_f32 v{wl+k}, v{ai+k}, s56, -v{wh+k}
v_fma_f32 v{wl+k}, v{ai+k}, s57, v{wl+k}
""")
    a(f"""
v_frexp_exp_i32_f32 v{mx}, v{mx}
v_readlane_b32 s58, v{mx}, 63
s_max_i32 s58, s58, -100
s_min_i32 s58, s58, 120
s_sub_i32 s59, 7, s58
s_sub_i32 s58, s58, 6
""")
    G0 = R.alloc(4, 2)
    for k in (0, 1):
        a(f"v_ldexp_f32 v{G0+k}, v{cr+k}, s59\nv_ldexp_f32 v{G0+2+k}, v{ci+k}, s59")
    E = {}
    for e in (1, 8, 128):
        E[e] = R.alloc(4, 2)
        for k in (0, 1):
            a(f"""
v_mul_f32 v{t[0+4*k]}, {f32(float(e))}, v{la+k}
v_mul_f32 v{t[1+4*k]}, {f32(float(e))}, v{wh+k}
v_exp_f32 v{t[0+4*k]}, v{t[0+4*k]}
v_fract_f32 v{t[1+4*k]}, v{t[1+4*k]}
v_mul_f32 v{t[2+4*k]}, {f32(float(e))}, v{wl+k}
v_add_f32 v{t[1+4*k]}, v{t[1+4*k]}, v{t[2+4*k]}
v_cos_f32 v{t[2+4*k]}, v{t[1+4*k]}
v_sin_f32 v{t[3+4*k]}, v{t[1+4*k]}
""")
        for k in (0, 1):
            a(f"""
v_mul_f32 v{E[e]+k}, v{t[0+4*k]}, v{t[2+4*k]}
v_mul_f32 v{E[e]+2+k}, v{t[0+4*k]}, v{t[3+4*k]}
""")
    a(f"s_waitcnt vmcnt({NPF})")
    XO = R.alloc(16, 4)
    for c in range(4):
        for rp in range(4):
            sel = "s52" if (c & 1) == 0 else "s53"
            a(f"v_perm_b32 v{XO+4*c+rp}, v{XR+2*(2*rp+1)+(c>>1)}, v{XR+2*(2*rp)+(c>>1)}, {sel}")
    a(f"""
s_lshl_b32 s7, s2, 14
s_lshl_b32 s54, s3, 12
s_add_u32 s7, s7, s54
v_lshlrev_b32 v{vxo}, 6, v2
""")
    for c in range(4):
        a(f"buffer_store_dwordx4 {vr(XO+4*c,4)}, v{vxo}, s[{S_WS}:{S_WS+3}], s7 offen offset:{16*c}")
    vw = R.alloc()
    a(f"""
s_mul_i32 s54, s3, {KG_WAVEB}
v_lshlrev_b32 v{vw}, 3, v2
v_add_u32 v{vw}, s54, v{vw}
""")
    TM = [R.alloc(2, 2) for _ in range(4)]
    PK = [R.alloc(2, 2) for _ in range(4)]
    cnt = [0]

    def cmul(D, X, Ee):
        i = cnt[0] & 1
        t0, t1 = TM[2 * i], TM[2 * i + 1]
        cnt[0] += 1
        a(f"""
v_pk_mul_f32 {vr(t0,2)}, {vr(X+2,2)}, {vr(Ee+2,2)}
v_pk_mul_f32 {vr(t1,2)}, {vr(X+2,2)}, {vr(Ee,2)}
v_pk_fma_f32 {vr(D,2)}, {vr(X,2)}, {vr(Ee,2)}, {vr(t0,2)} neg_lo:[0,0,1] neg_hi:[0,0,1]
v_pk_fma_f32 {vr(D+2,2)}, {vr(X,2)}, {vr(Ee+2,2)}, {vr(t1,2)}
""")

    pc = [0]

    def put(X, slot, neg):
        p = PK[pc[0] & 3]
        pc[0] += 1
        n = "-" if neg else ""
        a(f"""
v_cvt_pk_f16_f32 v{p}, v{X}, {n}v{X+2}
v_cvt_pk_f16_f32 v{p+1}, v{X+1}, {n}v{X+3}
ds_write_b64 v{vw}, {vr(p,2)} offset:{slot*KG_ROWB}
""")

    one = R.alloc(2, 2)
    a(f"v_mov_b32 v{one}, 0x3c00\nv_mov_b32 v{one+1}, 0x3c00\nds_write_b64 v{vw}, {vr(one,2)} offset:0")
    Gs = {0: G0}
    for ex in list(range(1, 8)):
        Gs[ex] = R.alloc(4, 2)
    La, Lb = R.alloc(4, 2), R.alloc(4, 2)
    put(E[8], 1, False)
    put(G0, 16, True)
    Lcur = E[8]
    for j in range(2, 16):
        Ln = La if (j & 1) == 0 else Lb
        cmul(Ln, Lcur, E[8])
        if j - 1 <= 7:
            cmul(Gs[j - 1], Gs[j - 2], E[1])
            put(Gs[j - 1], 16 + j - 1, True)
        put(Ln, j, False)
        Lcur = Ln
    Hs = {ex: R.alloc(4, 2) for ex in range(8)}
    for ex in range(8):
        cmul(Hs[ex], Gs[ex], E[128])
    for ex in range(8):
        put(Hs[ex], 24 + ex, True)
    for ex in (0, 2, 4, 6):
        cmul(Gs[ex], Hs[ex], E[128])
    cmul(Gs[1], Gs[0], E[8])
    for i, ex in enumerate((0, 2, 4, 6)):
        put(Gs[ex], 32 + i, True)
    put(Gs[1], 36, True)
    for ex in (0, 2, 4, 6, 1):
        cmul(Hs[ex], Gs[ex], E[128])
    for i, ex in enumerate((0, 2, 4, 6, 1)):
        put(Hs[ex], 37 + i, True)
    ca, cb = Hs[4], Hs[1]
    banks = [(Gs[2], Gs[3]), (Gs[4], Gs[5])]
    for i in range(4):
        na, nb = banks[i & 1]
        cmul(na, ca, E[128])
        cmul(nb, cb, E[128])
        put(na, 42 + 2 * i, True)
        put(nb, 42 + 2 * i + 1, True)
        ca, cb = na, nb
    E256 = Hs[0]
    cmul(E256, E[128], E[128])
    x0, x1 = Hs[2], Hs[3]
    cmul(x0, cb, E[128])
    cmul(x1, cb, E256)
    put(x0, 50, True)
    put(x1, 51, True)
    banks = [(Hs[5], Hs[6]), (Hs[2], Hs[3])]
    for i in range(3):
        n0, n1 = banks[i & 1]
        cmul(n0, x0, E256)
        cmul(n1, x1, E256)
        put(n0, 52 + 2 * i, True)
        put(n1, 53 + 2 * i, True)
        x0, x1 = n0, n1
    vi, vq = R.alloc(), R.alloc()
    aL, aA, aB, aC = [R.alloc() for _ in range(4)]
    a(f"""
v_and_b32 v{vi}, 15, v2
v_lshrrev_b32 v{vq}, 4, v2
v_lshlrev_b32 v{t[0]}, 4, v{vq}
v_add_u32 v{t[0]}, s54, v{t[0]}
v_mul_u32_u24 v{t[1]}, {KG_ROWB}, v{vi}
v_add_u32 v{aL}, v{t[0]}, v{t[1]}
v_add_u32 v{aA}, {16*KG_ROWB}, v{aL}
v_add_u32 v{aC}, {42*KG_ROWB}, v{aL}
v_and_b32 v{t[2]}, 7, v{vi}
v_lshlrev_b32 v{t[2]}, 2, v{t[2]}
s_mov_b32 s56, 0x43222100
v_lshrrev_b32 v{t[2]}, v{t[2]}, s56
v_and_b32 v{t[2]}, 15, v{t[2]}
v_lshrrev_b32 v{t[3]}, 3, v{vi}
v_mul_u32_u24 v{t[3]}, 5, v{t[3]}
v_add3_u32 v{t[2]}, v{t[2]}, v{t[3]}, 32
v_mul_u32_u24 v{t[2]}, {KG_ROWB}, v{t[2]}
v_add_u32 v{aB}, v{t[0]}, v{t[2]}
""")
    R2 = Regs(100, 240)
    assert R.hi <= 240
    base = (R.n + 3) // 4 * 4
    FL = [XR + 4 * s for s in range(4)] + [XO + 4 * s for s in range(4)]
    FA = [base + 4 * s for s in range(8)]
    base += 32
    assert base + 16 <= 240, base
    DA, DB, DC, DCT = base, base + 4, base + 8, base + 12
    a("s_waitcnt lgkmcnt(0)")
    for s in range(8):
        a(f"ds_read_b128 {vr(FL[s],4)}, v{aL} offset:{64*s}")
    for s in range(8):
        a(f"ds_read_b128 {vr(FA[s],4)}, v{aA} offset:{64*s}")
    for s in range(8):
        a(f"s_waitcnt lgkmcnt({7-s})")
        c = "0" if s == 0 else vr(DA, 4)
        a(f"v_mfma_f32_16x16x32_f16 {vr(DA,4)}, {vr(FA[s],4)}, {vr(FL[s],4)}, {c}")
    FB = [Gs[1] + 0] * 8
    blk = sorted(list(Gs.values()) + list(Hs.values()))
    FBs = blk[:8]
    FCs = blk[8:16]
    for s in range(8):
        a(f"ds_read_b128 {vr(FBs[s],4)}, v{aB} offset:{64*s}")
    for s in range(8):
        a(f"ds_read_b128 {vr(FCs[s],4)}, v{aC} offset:{64*s}")
    for s in range(8):
        a(f"s_waitcnt lgkmcnt({15-s})")
        c = "0" if s == 0 else vr(DB, 4)
        a(f"v_mfma_f32_16x16x32_f16 {vr(DB,4)}, {vr(FBs[s],4)}, {vr(FL[s],4)}, {c}")
    for s in range(8):
        a(f"s_waitcnt lgkmcnt({7-s})")
        c = "0" if s == 0 else vr(DC, 4)
        a(f"v_mfma_f32_16x16x32_f16 {vr(DC,4)}, {vr(FCs[s],4)}, {vr(FL[s],4)}, {c}")
        c = "0" if s == 0 else vr(DCT, 4)
        a(f"v_mfma_f32_16x16x32_f16 {vr(DCT,4)}, {vr(FL[s],4)}, {vr(FCs[s],4)}, {c}")
    P = FA[0]
    a(f"""
s_lshl_b32 s5, s4, 11
s_add_u32 s5, s5, {WS_TAB}
v_lshlrev_b32 v{t[0]}, 4, v{vi}
v_and_b32 v{t[1]}, 1, v{vq}
v_lshl_add_u32 v{t[0]}, v{t[1]}, 3, v{t[0]}
v_lshrrev_b32 v{t[1]}, 1, v{vq}
v_lshl_add_u32 v{t[0]}, v{t[1]}, 8, v{t[0]}
v_sub_u32 v{t[0]}, {1080-512}, v{t[0]}
v_cvt_pk_f16_f32 v{P}, v{DA+3}, v{DA+2}
v_cvt_pk_f16_f32 v{P+1}, v{DA+1}, v{DA}
buffer_store_dwordx2 {vr(P,2)}, v{t[0]}, s[{S_WS}:{S_WS+3}], s5 offen offset:512
v_cvt_pk_f16_f32 v{P+2}, v{DB+3}, v{DB+2}
v_cvt_pk_f16_f32 v{P+3}, v{DB+1}, v{DB}
buffer_store_dwordx2 {vr(P+2,2)}, v{t[0]}, s[{S_WS}:{S_WS+3}], s5 offen
v_readlane_b32 s56, v{P+2}, 63
v_lshlrev_b32 v{t[1]}, 2, v{vi}
v_lshl_add_u32 v{t[1]}, v{vq}, 7, v{t[1]}
v_cvt_pk_f16_f32 v{P+4}, v{DC}, v{DC+1}
v_cvt_pk_f16_f32 v{P+5}, v{DC+2}, v{DC+3}
v_lshlrev_b32 v{t[2]}, 5, v{vi}
v_lshl_add_u32 v{t[2]}, v{vq}, 3, v{t[2]}
v_cvt_pk_f16_f32 v{P+6}, v{DCT}, v{DCT+1}
v_cvt_pk_f16_f32 v{P+7}, v{DCT+2}, v{DCT+3}
v_lshlrev_b32 v{t[3]}, 4, v2
v_add_u32 v{t[4]}, 1024, v{t[3]}
v_cmp_le_u32 vcc, 4, v2
v_cndmask_b32 v{t[3]}, v{t[3]}, v{t[4]}, vcc
v_add_u32 v{t[4]}, 256, v{t[3]}
v_cmp_le_u32 vcc, 14, v2
v_cndmask_b32 v{t[3]}, v{t[3]}, v{t[4]}, vcc
s_and_b32 s56, s56, 0xffff
s_lshl_b32 s57, s56, 16
s_or_b32 s56, s56, s57
v_mov_b32 v{P+8}, 0
v_mov_b32 v{P+9}, 0
v_mov_b32 v{t[4]}, s57
v_mov_b32 v{t[5]}, s56
v_cmp_eq_u32 vcc, 3, v2
v_cndmask_b32 v{P+10}, 0, v{t[4]}, vcc
v_cndmask_b32 v{P+11}, 0, v{t[5]}, vcc
v_mov_b32 v{t[6]}, 1.0
v_ldexp_f32 v{t[6]}, v{t[6]}, s58
s_mov_b32 s56, -1
s_mov_b32 s57, 0
s_mov_b64 exec, s[56:57]
buffer_store_dword v{P+4}, v{t[1]}, s[{S_WS}:{S_WS+3}], s5 offen offset:{TB_T2}
buffer_store_dword v{P+5}, v{t[1]}, s[{S_WS}:{S_WS+3}], s5 offen offset:{TB_T2+64}
s_mov_b32 s56, 0xff00ff00
s_mov_b32 s57, 0xff00ff00
s_mov_b64 exec, s[56:57]
buffer_store_dwordx2 {vr(P+6,2)}, v{t[2]}, s[{S_WS}:{S_WS+3}], s5 offen offset:{TB_T3-256}
s_mov_b64 exec, 0x3fffff
buffer_store_dwordx4 {vr(P+8,4)}, v{t[3]}, s[{S_WS}:{S_WS+3}], s5 offen
s_mov_b64 exec, 1
buffer_store_dword v{t[6]}, v{vz}, s[{S_WS}:{S_WS+3}], s5 offen offset:{TB_KS}
""")
    if STAMP:
        a("s_add_u32 s3, s3, 4")
    stamp(a, 0, 1, 3, S_WS, 250, 60)
    a.label("K1_END")
    a("s_endpgm")
    return a


def kernel_text(name, a):
    return f""".globl {name}
.p2align 8
.type {name},@function
{name}:
""" + a.text()


def kd(name, vgpr, sgpr=96):
    return f""".p2align 6
.amdhsa_kernel {name}
  .amdhsa_next_free_vgpr {vgpr}
  .amdhsa_next_free_sgpr {sgpr}
  .amdhsa_accum_offset {vgpr}
  .amdhsa_group_segment_fixed_size 0
  .amdhsa_kernarg_size 120
  .amdhsa_user_sgpr_count 2
  .amdhsa_user_sgpr_kernarg_segment_ptr 1
  .amdhsa_system_sgpr_workgroup_id_x 1
  .amdhsa_float_denorm_mode_32 3
.end_amdhsa_kernel
"""


if __name__ == "__main__":
    import gen2
    k1 = gen_k1()
    k2, K2_LDS = gen2.gen_k2(sys.modules[__name__])
    k3 = gen2.gen_k3(sys.modules[__name__])
    hdr = f"""; S4D FFT-conv + LayerNorm + top-1 routed SwiGLU, 3-launch pipeline (generated by work/gen.py)
; @launch kernel=k1_kernel grid=(256,1,1) block=(512,1,1) lds={K1_LDS}
; @launch kernel=k2_kernel grid=(256,1,1) block=(512,1,1) lds={K2_LDS}
; @launch kernel=k3_kernel grid=(32,1,1) block=(256,1,1) lds=4096
.amdgcn_target "amdgcn-amd-amdhsa--gfx950"
.text
"""
    txt = hdr + kernel_text("k1_kernel", k1) + kernel_text("k2_kernel", k2) + kernel_text("k3_kernel", k3)
    txt += '.section .rodata,"a"\n' + kd("k1_kernel", 256) + kd("k2_kernel", 256) + kd("k3_kernel", 64)
    open(OUT, "w").write(txt)
    print("wrote", OUT, len(txt))
```

```python
from asmlib import *

L_U = 0
L_KC = 4608
KCS = 1344
L_S3 = L_KC + 4 * KCS
L_S5 = L_S3 + 3200
L_S7 = L_S5 + 3200
L_S9 = L_S7 + 2128
L_TT = L_S9 + 2080
L_END = L_TT + 768
CH = 21504
assert L_END <= CH and L_TT % 16 == 0, (L_END, L_TT)
L_Y = L_S3
L_MISC = 4 * CH
L_CNT_CONV = L_MISC
L_CNT_FFN = L_MISC + 4
L_IDX = L_MISC + 8
L_FFN = L_MISC + 64
K2_LDS = L_MISC + 64 + 512


def lds_sync(a, name, cnt_addr, target, vtmp, vone, stmp):
    a(f"""
s_waitcnt lgkmcnt(0)
v_mov_b32 v{vtmp}, {cnt_addr}
v_mov_b32 v{vone}, 1
s_mov_b64 exec, 1
ds_add_u32 v{vtmp}, v{vone}
s_mov_b64 exec, -1
{name}:
ds_read_b32 v{vone}, v{vtmp}
s_waitcnt lgkmcnt(0)
v_readfirstlane_b32 s{stmp}, v{vone}
s_nop 1
s_cmp_lt_u32 s{stmp}, {target}
s_cbranch_scc1 {name}
""")


def gen_k2(G):
    f32 = G.f32
    a = Asm()
    S_X, S_WS, S_OUT, S_WG, S_WU, S_WD = 8, 12, 16, 20, 24, 28
    a(f"""
s_cmp_ge_u32 s2, 256
s_cbranch_scc1 K2_END
s_load_dwordx2 s[{S_X}:{S_X+1}], s[0:1], 0
s_load_dwordx2 s[{S_WS}:{S_WS+1}], s[0:1], 112
s_load_dwordx2 s[{S_OUT}:{S_OUT+1}], s[0:1], 96
s_load_dwordx2 s[{S_WG}:{S_WG+1}], s[0:1], 72
s_load_dwordx2 s[{S_WU}:{S_WU+1}], s[0:1], 80
s_load_dwordx2 s[{S_WD}:{S_WD+1}], s[0:1], 88
s_load_dwordx2 s[32:33], s[0:1], 48
v_lshrrev_b32 v1, 6, v0
v_and_b32 v2, 63, v0
v_readfirstlane_b32 s3, v1
""")
    G.srd(a, S_X, 4 << 20)
    G.srd(a, S_WS, G.WS_SIZE)
    G.srd(a, S_OUT, 4 << 20)
    for s in (S_WG, S_WU, S_WD):
        G.srd(a, s, 7340032)
    a(f"""
s_and_b32 s4, s2, 7
s_lshr_b32 s5, s2, 3
s_lshl_b32 s6, s4, 5
s_add_u32 s6, s6, s5
s_waitcnt lgkmcnt(0)
""")
    G.stamp(a, 1, 0, 3, S_WS, 250, 60)
    a(f"""
s_cmp_ge_u32 s3, 4
s_cbranch_scc1 K2_FFN
""")
    R = Regs(4, 250)
    X = R.alloc(16, 4)
    ST = R.alloc(16, 4)
    F = {}
    deltas = list(range(1, 34, 2))
    for d in deltas:
        F[d] = R.alloc(4, 4)
    B2 = {b: R.alloc(4, 4) for b in range(3, 9)}
    ACC = [R.alloc(4, 4) for _ in range(8)]
    NG = 6
    GR = [R.alloc(4, 4) for _ in range(NG)]
    BAND = [R.alloc(4, 4) for _ in range(4)]
    B3 = {b: BAND[b - 4] for b in range(4, 8)}
    vB3, vB2, vF = R.alloc(), R.alloc(), R.alloc()
    AFIX = R.alloc(4, 4)
    vn, vq, vcb = R.alloc(), R.alloc(), R.alloc()
    vkk, vks = R.alloc(), R.alloc()
    t = [R.alloc() for _ in range(8)]
    vta = R.alloc()
    KA, KB, KA2, KB2, KT_, KO1, KO3, KP1, KP3 = [F[d] for d in deltas[:9]]
    KC_, KC2 = F[deltas[9]], F[deltas[9]] + 1
    a(f"""
s_setprio 2
s_lshl_b32 s7, s6, 14
s_add_u32 s39, s7, 8192
v_lshlrev_b32 v{t[0]}, 4, v0
v_add_u32 v{t[1]}, 4096, v{t[0]}
buffer_load_dwordx4 {vr(X,4)}, v{t[0]}, s[{S_WS}:{S_WS+3}], s7 offen
buffer_load_dwordx4 {vr(X+4,4)}, v{t[1]}, s[{S_WS}:{S_WS+3}], s7 offen
buffer_load_dwordx4 {vr(X+8,4)}, v{t[0]}, s[{S_WS}:{S_WS+3}], s39 offen
buffer_load_dwordx4 {vr(X+12,4)}, v{t[1]}, s[{S_WS}:{S_WS+3}], s39 offen
v_lshlrev_b32 v{t[1]}, 6, v0
s_mov_b32 s7, {G.WS_STAT}
buffer_load_dwordx4 {vr(ST,4)}, v{t[1]}, s[{S_WS}:{S_WS+3}], s7 offen
buffer_load_dwordx4 {vr(ST+4,4)}, v{t[1]}, s[{S_WS}:{S_WS+3}], s7 offen offset:16
buffer_load_dwordx4 {vr(ST+8,4)}, v{t[1]}, s[{S_WS}:{S_WS+3}], s7 offen offset:32
buffer_load_dwordx4 {vr(ST+12,4)}, v{t[1]}, s[{S_WS}:{S_WS+3}], s7 offen offset:48
s_lshl_b32 s34, s6, 3
s_load_dwordx2 s[36:37], s[32:33], s34
v_and_b32 v{vn}, 15, v2
v_lshrrev_b32 v{vq}, 4, v2
s_lshl_b32 s35, s6, 2
s_add_u32 s35, s35, s3
s_lshl_b32 s35, s35, 11
s_add_u32 s35, s35, {G.WS_TAB}
v_lshlrev_b32 v{t[2]}, 4, v2
v_mov_b32 v{t[3]}, 0x7ffffff0
v_mov_b32 v{t[4]}, 1024
v_cmp_eq_u32 vcc, 2, v2
v_cndmask_b32 v{t[3]}, v{t[3]}, v{t[4]}, vcc
v_mov_b32 v{t[7]}, 0
buffer_load_dwordx4 {vr(KA,4)}, v{t[2]}, s[{S_WS}:{S_WS+3}], s35 offen offset:16
buffer_load_dwordx4 {vr(KB,4)}, v{t[2]}, s[{S_WS}:{S_WS+3}], s35 offen offset:12
buffer_load_dword v{KC_}, v{t[2]}, s[{S_WS}:{S_WS+3}], s35 offen offset:8
buffer_load_dwordx4 {vr(KA2,4)}, v{t[3]}, s[{S_WS}:{S_WS+3}], s35 offen offset:16
buffer_load_dwordx4 {vr(KB2,4)}, v{t[3]}, s[{S_WS}:{S_WS+3}], s35 offen offset:12
buffer_load_dword v{KC2}, v{t[3]}, s[{S_WS}:{S_WS+3}], s35 offen offset:8
buffer_load_dwordx4 {vr(KT_,4)}, v{t[2]}, s[{S_WS}:{S_WS+3}], s35 offen offset:{G.TB_TT}
buffer_load_ushort v{vkk}, v{t[7]}, s[{S_WS}:{S_WS+3}], s35 offen offset:{G.TB_T2+254}
buffer_load_dword v{vks}, v{t[7]}, s[{S_WS}:{S_WS+3}], s35 offen offset:{G.TB_KS}
""")
    NTAB = 9
    a(f"""
s_mul_i32 s38, s3, {CH}
v_mov_b32 v{GR[0]}, 0
v_mov_b32 v{GR[0]+1}, 0
v_mov_b32 v{GR[0]+2}, 0
v_mov_b32 v{GR[0]+3}, 0
v_lshlrev_b32 v{t[0]}, 4, v2
v_add_u32 v{t[0]}, s38, v{t[0]}
s_mov_b32 s40, -1
s_mov_b32 s41, 0
s_mov_b64 exec, s[40:41]
ds_write_b128 v{t[0]}, {vr(GR[0],4)}
s_mov_b64 exec, 3
ds_write_b128 v{t[0]}, {vr(GR[0],4)} offset:{L_S3}
ds_write_b128 v{t[0]}, {vr(GR[0],4)} offset:{L_S5}
ds_write_b128 v{t[0]}, {vr(GR[0],4)} offset:{L_S7}
ds_write_b128 v{t[0]}, {vr(GR[0],4)} offset:{L_S9}
s_mov_b64 exec, -1
""")
    vsh = t[0]
    a(f"v_lshlrev_b32 v{vsh}, 3, v{vq}\ns_mov_b32 s39, 0x3c00")
    for wi, w in enumerate((1, 2, 3, 4)):
        a(f"""
v_add_u32 v{t[1]}, {4-w}, v{vn}
v_lshlrev_b32 v{t[1]}, v{t[1]}, {(1 << (2*w+1)) - 1 if (1 << (2*w+1)) - 1 <= 64 else 's40'}
""" if (1 << (2 * w + 1)) - 1 <= 64 else f"""
s_mov_b32 s40, {(1 << (2*w+1)) - 1}
v_add_u32 v{t[1]}, {4-w}, v{vn}
v_lshlrev_b32 v{t[1]}, v{t[1]}, s40
""")
        a(f"v_lshrrev_b32 v{t[1]}, v{vsh}, v{t[1]}")
        for k in range(4):
            a(f"""
v_bfe_u32 v{t[2]}, v{t[1]}, {2*k}, 1
v_bfe_u32 v{t[3]}, v{t[1]}, {2*k+1}, 1
v_lshl_or_b32 v{t[2]}, v{t[3]}, 16, v{t[2]}
v_mul_u32_u24 v{BAND[wi]+k}, s39, v{t[2]}
""")
    a(f"""
v_add_u32 v{t[1]}, 12, v{vn}
v_lshlrev_b32 v{t[1]}, v{t[1]}, 3
v_lshrrev_b32 v{t[1]}, v{vsh}, v{t[1]}
""")
    for k in range(4):
        a(f"""
v_bfe_u32 v{t[2]}, v{t[1]}, {2*k}, 1
v_bfe_u32 v{t[3]}, v{t[1]}, {2*k+1}, 1
v_lshl_or_b32 v{AFIX+k}, v{t[3]}, 16, v{t[2]}
""")
    vG, vSW, vA2, vA3 = R.alloc(), R.alloc(), R.alloc(), R.alloc()
    a(f"""
v_lshlrev_b32 v{t[1]}, 5, v{vn}
v_add_u32 v{t[1]}, s38, v{t[1]}
v_lshl_add_u32 v{vG}, v{vq}, 4, v{t[1]}
v_lshl_add_u32 v{vSW}, v{vq}, 3, v{t[1]}
; r = n>>2, cc = n&3
v_lshrrev_b32 v{t[2]}, 2, v{vn}
v_and_b32 v{t[3]}, 3, v{vn}
v_and_b32 v{t[4]}, 1, v{t[2]}
v_mul_u32_u24 v{t[5]}, {L_S5-L_S3}, v{t[4]}
v_lshl_add_u32 v{t[5]}, v{vq}, 6, v{t[5]}
v_lshl_add_u32 v{t[5]}, v{t[3]}, 3, v{t[5]}
v_lshlrev_b32 v{t[6]}, 3, v{t[2]}
v_sub_u32 v{t[5]}, v{t[5]}, v{t[6]}
v_add_u32 v{t[5]}, {L_S3+32}, v{t[5]}
v_add_u32 v{vA2}, s38, v{t[5]}
;        = .. + 56 + 128q - 32(r>>1) - 16(r&1) + 8cc
v_mul_u32_u24 v{t[5]}, {L_S9-L_S7-16}, v{t[4]}
v_lshl_add_u32 v{t[5]}, v{vq}, 7, v{t[5]}
v_lshl_add_u32 v{t[5]}, v{t[3]}, 3, v{t[5]}
v_lshrrev_b32 v{t[6]}, 1, v{t[2]}
v_lshlrev_b32 v{t[6]}, 5, v{t[6]}
v_sub_u32 v{t[5]}, v{t[5]}, v{t[6]}
v_add_u32 v{t[5]}, {L_S7+56}, v{t[5]}
v_add_u32 v{vA3}, s38, v{t[5]}
v_lshlrev_b32 v{vta}, 4, v0
v_mul_u32_u24 v{t[5]}, {KCS}, v{t[2]}
v_lshl_add_u32 v{t[5]}, v{t[3]}, 3, v{t[5]}
v_lshlrev_b32 v{t[6]}, 4, v{vq}
v_sub_u32 v{t[5]}, v{t[5]}, v{t[6]}
v_add_u32 v{t[5]}, {L_KC+32-8}, v{t[5]}
v_add_u32 v{vF}, s38, v{t[5]}
v_lshlrev_b32 v{t[5]}, 3, v{vn}
v_sub_u32 v{t[5]}, v{t[5]}, v{t[6]}
v_add_u32 v{t[5]}, {L_TT+128-264}, v{t[5]}
v_add_u32 v{vB2}, s38, v{t[5]}
v_lshlrev_b32 v{t[5]}, 2, v{vn}
v_sub_u32 v{t[5]}, v{t[5]}, v{t[6]}
v_add_u32 v{t[5]}, {L_TT+512-268}, v{t[5]}
v_add_u32 v{vB3}, s38, v{t[5]}
v_lshlrev_b32 v{t[5]}, 4, v2
v_add_u32 v{t[5]}, s38, v{t[5]}
v_add_u32 v{t[6]}, 1024, v{t[5]}
v_cmp_gt_u32 vcc, 2, v2
v_cndmask_b32 v{t[6]}, v{t[6]}, v{t[5]}, vcc
""")
    G.stamp(a, 1, 5, 3, S_WS, 250, 60)
    if G.STAMP:
        NTAB += 1
    a(f"s_waitcnt vmcnt({NTAB})")
    G.stamp(a, 1, 4, 3, S_WS, 250, 60)
    XN = R.alloc(16, 4)
    W = ACC[0]
    for c in range(4):
        f = W + 8 * (c & 1)
        h = W + 16 + 4 * (c & 1)
        for k in range(4):
            a(f"v_lshlrev_b32 v{f+2*k}, 16, v{X+4*c+k}\nv_and_b32 v{f+2*k+1}, 0xffff0000, v{X+4*c+k}")
        for k in range(8):
            a(f"v_sub_f32 v{f+k}, v{f+k}, v{ST+2*k}")
        for k in range(4):
            a(f"v_cvt_pk_bf16_f32 v{h+k}, v{f+2*k}, v{f+2*k+1}")
        for k in range(4):
            a(f"v_lshlrev_b32 v{f+2*k}, 16, v{h+k}\nv_and_b32 v{f+2*k+1}, 0xffff0000, v{h+k}")
        for k in range(8):
            a(f"v_mul_f32 v{f+k}, v{f+k}, v{ST+2*k+1}")
        for k in range(4):
            a(f"v_cvt_pk_bf16_f32 v{XN+4*c+k}, v{f+2*k}, v{f+2*k+1}")
        for k in range(4):
            a(f"v_lshlrev_b32 v{f+2*k}, 16, v{XN+4*c+k}\nv_and_b32 v{f+2*k+1}, 0xffff0000, v{XN+4*c+k}")
        for k in range(4):
            a(f"v_cvt_pk_f16_f32 v{h+k}, v{f+2*k}, v{f+2*k+1}")
        a(f"ds_write_b128 v{vta}, {vr(h,4)} offset:{c*CH+512}")
    a("s_waitcnt vmcnt(0)")
    for (A_, B_, C_, O1, O3) in ((KA, KB, KC_, KO1, KO3), (KA2, KB2, KC2, KP1, KP3)):
        a(f"""
v_alignbit_b32 v{O1}, v{A_}, v{B_}, 16
v_alignbit_b32 v{O1+1}, v{A_+1}, v{A_}, 16
v_alignbit_b32 v{O1+2}, v{A_+2}, v{A_+1}, 16
v_alignbit_b32 v{O1+3}, v{A_+3}, v{A_+2}, 16
v_alignbit_b32 v{O3}, v{B_}, v{C_}, 16
v_alignbit_b32 v{O3+1}, v{A_}, v{B_}, 16
v_alignbit_b32 v{O3+2}, v{A_+1}, v{A_}, 16
v_alignbit_b32 v{O3+3}, v{A_+2}, v{A_+1}, 16
""")
    a(f"""
ds_write_b128 v{t[5]}, {vr(KA,4)} offset:{L_KC+32}
ds_write_b128 v{t[5]}, {vr(KO1,4)} offset:{L_KC+32+KCS}
ds_write_b128 v{t[5]}, {vr(KB,4)} offset:{L_KC+32+2*KCS}
ds_write_b128 v{t[5]}, {vr(KO3,4)} offset:{L_KC+32+3*KCS}
s_mov_b64 exec, 0x3f
ds_write_b128 v{t[6]}, {vr(KA2,4)} offset:{L_KC}
ds_write_b128 v{t[6]}, {vr(KP1,4)} offset:{L_KC+KCS}
ds_write_b128 v{t[6]}, {vr(KB2,4)} offset:{L_KC+2*KCS}
ds_write_b128 v{t[6]}, {vr(KP3,4)} offset:{L_KC+3*KCS}
s_mov_b32 s40, -1
s_mov_b32 s41, 0xffff
s_mov_b64 exec, s[40:41]
ds_write_b128 v{t[5]}, {vr(KT_,4)} offset:{L_TT}
s_mov_b64 exec, -1
""")
    for k in range(4):
        a(f"v_mul_u32_u24 v{AFIX+k}, v{vkk}, v{AFIX+k}")
    a("s_waitcnt lgkmcnt(0)\ns_barrier")
    G.stamp(a, 1, 1, 3, S_WS, 250, 60)
    for j in range(6):
        a(f"ds_read_b128 {vr(GR[j],4)}, v{vG} offset:{496+512*j}")
    jobs = []
    for j in range(6):
        for wi, (w, base) in enumerate(((1, L_S3), (2, L_S5), (3, L_S7), (4, L_S9))):
            if wi >= 2 and j >= 4:
                continue
            jobs.append((j, wi, base))
    PKS = [ST + 2 * i for i in range(8)]

    def drain(idx):
        j, wi, base = jobs[idx]
        d = ACC[idx % 8]
        p = PKS[idx % 8]
        a(f"""
v_cvt_pk_f16_f32 v{p}, v{d}, v{d+1}
v_cvt_pk_f16_f32 v{p+1}, v{d+2}, v{d+3}
ds_write_b64 v{vSW}, {vr(p,2)} offset:{base+32+512*j}
""")
    lastj = -1
    nwritten = 0
    for idx, (j, wi, base) in enumerate(jobs):
        if j != lastj:
            a(f"s_waitcnt lgkmcnt({min(15, 5-j+nwritten)})")
            lastj = j
        a(f"v_mfma_f32_16x16x32_f16 {vr(ACC[idx%8],4)}, {vr(BAND[wi],4)}, {vr(GR[j],4)}, 0")
        if idx >= 4:
            drain(idx - 4)
            nwritten += 1
    for idx in range(len(jobs) - 4, len(jobs)):
        drain(idx)
    for d in deltas:
        a(f"ds_read_b64_tr_b16 {vr(F[d],2)}, v{vF} offset:{32*d+8}\nds_read_b64_tr_b16 {vr(F[d]+2,2)}, v{vF} offset:{32*d}")
    for b in range(3, 9):
        a(f"ds_read_b64 {vr(B2[b],2)}, v{vB2} offset:{64*b}\nds_read_b64 {vr(B2[b]+2,2)}, v{vB2} offset:{64*b+8}")
    for b in range(4, 8):
        a(f"ds_read2_b32 {vr(B3[b],2)}, v{vB3} offset0:{16*b} offset1:{16*b+1}\nds_read2_b32 {vr(B3[b]+2,2)}, v{vB3} offset0:{16*b+2} offset1:{16*b+3}")
    F[65] = AFIX
    es = list(range(-15, 112, 2))
    first = [True] * 8
    a("s_waitcnt lgkmcnt(0)")
    PD = NG - 1
    for i in range(PD):
        a(f"ds_read_b128 {vr(GR[i%NG],4)}, v{vG} offset:{512+32*es[i]}")
    items = []
    for e in es:
        ms = []
        for mu in range(8):
            d = 16 * mu - e
            if d in F:
                ms.append((mu, F[d], True))
        items.append((("G", e), ms))
    for j in range(12):
        ms = []
        for mu in range(8):
            b = 2 * mu - j
            if 3 <= b <= 8:
                ms.append((mu, B2[b], False))
        items.append((("A2", j), ms))
    for j in range(4):
        ms = []
        for mu in range(8):
            b = mu - j
            if 4 <= b <= 7:
                ms.append((mu, B3[b], False))
        items.append((("A3", j), ms))

    def issue_read(i):
        (kind, v), _ = items[i]
        g = GR[i % NG]
        if kind == "G":
            a(f"ds_read_b128 {vr(g,4)}, v{vG} offset:{512+32*v}")
            return 1
        if kind == "A2":
            a(f"ds_read_b64_tr_b16 {vr(g,2)}, v{vA2} offset:{256*v+32}\nds_read_b64_tr_b16 {vr(g+2,2)}, v{vA2} offset:{256*v}")
            return 2
        a(f"ds_read_b64_tr_b16 {vr(g,2)}, v{vA3} offset:{512*v+64}\nds_read_b64_tr_b16 {vr(g+2,2)}, v{vA3} offset:{512*v}")
        return 2

    def nops(i):
        return 1 if items[i][0][0] == "G" else 2
    nm = 0
    for i, (key, ms) in enumerate(items):
        if i + PD < len(items):
            issue_read(i + PD)
        out = sum(nops(k) for k in range(i + 1, min(i + PD + 1, len(items))))
        a(f"s_waitcnt lgkmcnt({out})")
        g = GR[i % NG]
        for (mu, other, near) in ms:
            c = "0" if first[mu] else vr(ACC[mu], 4)
            first[mu] = False
            if near:
                a(f"v_mfma_f32_16x16x32_f16 {vr(ACC[mu],4)}, {vr(other,4)}, {vr(g,4)}, {c}")
            else:
                a(f"v_mfma_f32_16x16x32_f16 {vr(ACC[mu],4)}, {vr(g,4)}, {vr(other,4)}, {c}")
            nm += 1
    assert nm == 126 + 4 + 40, nm
    G.stamp(a, 1, 2, 3, S_WS, 250, 60)
    for mu in range(8):
        d = ACC[mu]
        p = PKS[mu]
        for k in range(4):
            a(f"v_mul_f32 v{d+k}, v{vks}, v{d+k}")
        a(f"""
v_cvt_pk_bf16_f32 v{p}, v{d}, v{d+1}
v_cvt_pk_bf16_f32 v{p+1}, v{d+2}, v{d+3}
ds_write_b64 v{vSW}, {vr(p,2)} offset:{L_Y+512*mu}
""")
    Rf = Regs(F[1], F[1] + 68 + 24 + 32)
    XF = Rf.alloc(32, 4); NF = Rf.alloc(32, 4); TF = Rf.alloc(32, 4)
    a(f"""
s_waitcnt lgkmcnt(0)
s_lshl_b32 s40, s36, 16
s_and_b32 s41, s36, 0xffff0000
s_lshl_b32 s42, s37, 16
s_and_b32 s43, s37, 0xffff0000
v_mov_b32 v{t[0]}, {L_CNT_CONV}
v_mov_b32 v{t[1]}, 1
s_mov_b64 exec, 1
ds_add_u32 v{t[0]}, v{t[1]}
s_mov_b64 exec, -1
""")
    for c in range(4):
        for k in range(4):
            a(f"""
v_lshlrev_b32 v{XF+8*c+2*k}, 16, v{X+4*c+k}
v_and_b32 v{XF+8*c+2*k+1}, 0xffff0000, v{X+4*c+k}
v_lshlrev_b32 v{NF+8*c+2*k}, 16, v{XN+4*c+k}
v_and_b32 v{NF+8*c+2*k+1}, 0xffff0000, v{XN+4*c+k}
v_mul_f32 v{TF+8*c+2*k}, s{40+c}, v{NF+8*c+2*k}
v_mul_f32 v{TF+8*c+2*k+1}, s{40+c}, v{NF+8*c+2*k+1}
v_cvt_pk_bf16_f32 v{t[2]}, v{TF+8*c+2*k}, v{TF+8*c+2*k+1}
v_lshlrev_b32 v{TF+8*c+2*k}, 16, v{t[2]}
v_and_b32 v{TF+8*c+2*k+1}, 0xffff0000, v{t[2]}
""")
    a(f"""
K2_SPIN1:
ds_read_b32 v{t[1]}, v{t[0]}
s_waitcnt lgkmcnt(0)
v_readfirstlane_b32 s44, v{t[1]}
s_nop 1
s_cmp_lt_u32 s44, 4
s_cbranch_scc1 K2_SPIN1
""")
    Y = GR[0]
    assert Rf.n <= GR[0]
    for c in range(4):
        a(f"ds_read_b128 {vr(Y+4*c,4)}, v{vta} offset:{c*CH+L_Y}")
    a(f"""
ds_read_b32 v{t[3]}, v{t[0]} offset:8
s_mov_b32 s44, 0x00003f80
s_mov_b32 s45, 0x3f800000
s_lshl_b32 s46, s6, 3
v_lshlrev_b32 v{t[0]}, 14, v0
""")
    for c in range(4):
        a(f"s_waitcnt lgkmcnt({4-c})")
        for k in range(4):
            a(f"""
v_dot2_f32_bf16 v{TF+8*c+2*k}, v{Y+4*c+k}, s44, v{TF+8*c+2*k}
v_dot2_f32_bf16 v{TF+8*c+2*k+1}, v{Y+4*c+k}, s45, v{TF+8*c+2*k+1}
""")
    for c in range(4):
        for k in range(4):
            a(f"v_cvt_pk_bf16_f32 v{Y+4*c+k}, v{TF+8*c+2*k}, v{TF+8*c+2*k+1}")
    for c in range(4):
        for k in range(4):
            a(f"""
v_dot2_f32_bf16 v{XF+8*c+2*k}, v{Y+4*c+k}, s44, v{XF+8*c+2*k}
v_dot2_f32_bf16 v{XF+8*c+2*k+1}, v{Y+4*c+k}, s45, v{XF+8*c+2*k+1}
""")
    for c in range(4):
        for k in range(4):
            a(f"v_cvt_pk_bf16_f32 v{Y+4*c+k}, v{XF+8*c+2*k}, v{XF+8*c+2*k+1}")
    for c in range(4):
        for k in range(4):
            a(f"""
v_dot2_f32_bf16 v{NF+8*c+2*k}, v{Y+4*c+k}, s44, v{NF+8*c+2*k}
v_dot2_f32_bf16 v{NF+8*c+2*k+1}, v{Y+4*c+k}, s45, v{NF+8*c+2*k+1}
""")
    O = TF
    a(f"""
s_lshl_b32 s47, s6, 14
s_add_u32 s47, s47, {G.WS_OT}
s_add_u32 s48, s47, 8192
v_add_u32 v{t[1]}, 4096, v{vta}
""")
    for c in range(4):
        for k in range(4):
            a(f"v_cvt_pk_bf16_f32 v{O+4*c+k}, v{NF+8*c+2*k}, v{NF+8*c+2*k+1}")
        a(f"buffer_store_dwordx4 {vr(O+4*c,4)}, v{vta if (c&1)==0 else t[1]}, s[{S_WS}:{S_WS+3}], s{47 if c<2 else 48} offen {G.ST}")
    a(f"""
s_cmp_lg_u32 s3, 0
s_cbranch_scc1 K2_CEND
s_waitcnt lgkmcnt(0)
v_mul_u32_u24 v{t[1]}, {CH}, v2
v_lshl_add_u32 v{t[1]}, v{t[3]}, 1, v{t[1]}
v_lshlrev_b32 v{t[2]}, 1, v2
s_add_u32 s46, s46, {G.WS_ROW}
s_mov_b64 exec, 15
ds_read_u16 v{t[4]}, v{t[1]} offset:{L_Y}
s_waitcnt lgkmcnt(0)
buffer_store_short v{t[4]}, v{t[2]}, s[{S_WS}:{S_WS+3}], s46 offen {G.ST}
s_mov_b64 exec, -1
K2_CEND:
""")
    G.stamp(a, 1, 3, 3, S_WS, 250, 60)
    a("s_endpgm")

    a.label("K2_FFN")
    R = Regs(4, 250)
    vt = R.alloc()
    KEY = R.alloc(16, 4)
    WG_ = R.alloc(32, 4)
    WU_ = R.alloc(32, 4)
    WD_ = R.alloc(32, 4)
    t = [R.alloc() for _ in range(8)]
    a(f"""
v_subrev_u32 v{vt}, 256, v0
v_lshlrev_b32 v{t[0]}, 4, v2
s_mov_b32 s7, {G.WS_KEY}
buffer_load_dwordx4 {vr(KEY,4)}, v{t[0]}, s[{S_WS}:{S_WS+3}], s7 offen
buffer_load_dwordx4 {vr(KEY+4,4)}, v{t[0]}, s[{S_WS}:{S_WS+3}], s7 offen offset:1024
buffer_load_dwordx4 {vr(KEY+8,4)}, v{t[0]}, s[{S_WS}:{S_WS+3}], s7 offen offset:2048
buffer_load_dwordx4 {vr(KEY+12,4)}, v{t[0]}, s[{S_WS}:{S_WS+3}], s7 offen offset:3072
s_mul_i32 s34, s4, 28
s_add_u32 s34, s34, s5
s_lshl_b32 s35, s34, 5
s_cmp_ge_u32 s5, 28
s_cselect_b32 s35, 0x70000000, s35
v_lshrrev_b32 v{t[1]}, 1, v{vt}
v_and_b32 v{t[2]}, 1, v{vt}
s_mov_b32 s36, {8*7168}
v_mul_lo_u32 v{t[3]}, v{t[1]}, s36
v_lshl_add_u32 v{t[3]}, v{t[2]}, 4, v{t[3]}
""")
    for i in range(8):
        a(f"s_add_u32 s{40+i}, s35, {7168*i}")
    for i in range(8):
        a(f"buffer_load_dwordx4 {vr(WG_+4*i,4)}, v{t[3]}, s[{S_WG}:{S_WG+3}], s{40+i} offen")
        a(f"buffer_load_dwordx4 {vr(WU_+4*i,4)}, v{t[3]}, s[{S_WU}:{S_WU+3}], s{40+i} offen")
    a(f"""
v_mov_b32 v{t[4]}, {L_MISC}
v_mov_b32 v{t[6]}, 0
v_mov_b32 v{t[7]}, 0
s_waitcnt vmcnt(16)
""")
    assert t[7] == t[6] + 1 and t[6] % 2 == 0, (t[6], t[7])
    G.stamp(a, 1, 2, 3, S_WS, 250, 60)
    a(f"v_max3_u32 v{KEY}, v{KEY}, v{KEY+1}, v{KEY+2}")
    for k in range(3, 15, 2):
        a(f"v_max3_u32 v{KEY}, v{KEY}, v{KEY+k}, v{KEY+k+1}")
    a(f"v_max_u32 v{KEY}, v{KEY}, v{KEY+15}")
    G.wave_reduce(a, "v_max_u32", [KEY])
    XR = KEY + 4
    SR = KEY + 8
    a(f"""
v_readlane_b32 s36, v{KEY}, 63
s_and_b32 s37, s36, 0xffff
s_sub_u32 s37, 2047, s37
s_lshl_b32 s38, s37, 11
s_lshl_b32 s39, s37, 3
s_add_u32 s39, s39, {G.WS_STAT}
v_lshlrev_b32 v{t[5]}, 4, v{t[1]}
buffer_load_dwordx4 {vr(XR,4)}, v{t[5]}, s[{S_X}:{S_X+3}], s38 offen
buffer_load_dwordx2 {vr(SR,2)}, v{t[6]}, s[{S_WS}:{S_WS+3}], s39 offen
s_lshl_b32 s48, s34, 15
s_cmp_ge_u32 s5, 28
s_cselect_b32 s48, 0x70000000, s48
v_lshlrev_b32 v{t[0]}, 3, v{vt}
""")
    for f in range(16):
        if f % 2 == 0 and f > 0:
            a(f"s_add_u32 s48, s48, 4096")
        a(f"buffer_load_dwordx2 {vr(WD_+2*f,2)}, v{t[0]}, s[{S_WD}:{S_WD+3}], s48 offen offset:{(f&1)*2048} nt")
    a(f"""
v_mov_b32 v{KEY+1}, s37
s_mov_b64 exec, 1
ds_write_b64 v{t[4]}, {vr(t[6],2)}
ds_write_b32 v{t[4]}, v{KEY+1} offset:8
s_mov_b64 exec, -1
s_waitcnt lgkmcnt(0)
s_barrier
""")
    G.stamp(a, 1, 1, 3, S_WS, 250, 60)
    a(f"""
s_cmp_ge_u32 s5, 28
s_cbranch_scc1 K2_END
s_waitcnt vmcnt({17 if G.STAMP else 16})
""")
    G.stamp(a, 1, 4, 3, S_WS, 250, 60)
    f = R.alloc(8, 2)
    P = R.alloc(4, 4)
    LO = R.alloc(8, 2)
    HI = R.alloc(8, 2)
    for k in range(4):
        a(f"v_lshlrev_b32 v{f+2*k}, 16, v{XR+k}\nv_and_b32 v{f+2*k+1}, 0xffff0000, v{XR+k}")
    for k in range(8):
        a(f"v_sub_f32 v{f+k}, v{f+k}, v{SR}")
    for k in range(4):
        a(f"v_cvt_pk_bf16_f32 v{P+k}, v{f+2*k}, v{f+2*k+1}")
    for k in range(4):
        a(f"v_lshlrev_b32 v{f+2*k}, 16, v{P+k}\nv_and_b32 v{f+2*k+1}, 0xffff0000, v{P+k}")
    for k in range(8):
        a(f"v_mul_f32 v{f+k}, v{f+k}, v{SR+1}")
    for k in range(4):
        a(f"v_cvt_pk_bf16_f32 v{P+k}, v{f+2*k}, v{f+2*k+1}")
    for k in range(4):
        a(f"""
v_and_b32 v{LO+2*k}, 0xffff, v{P+k}
v_lshlrev_b32 v{HI+2*k}, 16, v{P+k}
v_lshrrev_b32 v{LO+2*k+1}, 16, v{P+k}
v_and_b32 v{HI+2*k+1}, 0xffff0000, v{P+k}
""")
    a(f"""
s_cmp_lg_u32 s2, 0
s_cbranch_scc1 K2_NOPUB
s_mov_b32 s38, {G.WS_ROW}
buffer_store_dwordx4 {vr(XR,4)}, v{t[5]}, s[{S_WS}:{S_WS+3}], s38 offen offset:2048 {G.ST}
s_add_u32 s38, s38, 4096
buffer_store_dwordx4 {vr(P,4)}, v{t[5]}, s[{S_WS}:{S_WS+3}], s38 offen {G.ST}
v_mov_b32 v{KEY+1}, s36
buffer_store_dword v{KEY+1}, v{t[6]}, s[{S_WS}:{S_WS+3}], s38 offen offset:2048 {G.ST}
K2_NOPUB:
""")
    AC = R.alloc(16, 4)
    for i in range(8):
        for m, Wb in ((0, WG_), (1, WU_)):
            for k in range(4):
                for h in range(2):
                    d = AC + 8 * m + 2 * k + h
                    xs = (LO if h == 0 else HI) + i
                    c = "0" if i == 0 else f"v{d}"
                    a(f"v_dot2_f32_bf16 v{d}, v{Wb+4*i+k}, v{xs}, {c}")
    for i in range(8):
        a(f"v_permlane32_swap_b32 v{AC+i}, v{AC+8+i}")
    for i in range(8):
        a(f"v_add_f32 v{AC+i}, v{AC+i}, v{AC+8+i}")
    for i in range(4):
        a(f"v_permlane16_swap_b32 v{AC+i}, v{AC+4+i}")
    for i in range(4):
        a(f"v_add_f32 v{AC+i}, v{AC+i}, v{AC+4+i}")
    for sh in (2, 4, 8):
        for i in range(4):
            a(f"v_add_f32_dpp v{AC+i}, v{AC+i}, v{AC+i} row_shr:{sh} row_mask:0xf bank_mask:0xf bound_ctrl:0")
    a(f"""
s_sub_u32 s38, s3, 4
s_lshl_b32 s38, s38, 7
v_lshrrev_b32 v{t[1]}, 5, v2
v_lshlrev_b32 v{t[1]}, 6, v{t[1]}
v_and_b32 v{t[2]}, 1, v2
v_lshl_add_u32 v{t[1]}, v{t[2]}, 5, v{t[1]}
v_bfe_u32 v{t[2]}, v2, 4, 1
v_lshl_add_u32 v{t[1]}, v{t[2]}, 4, v{t[1]}
v_add_u32 v{t[1]}, s38, v{t[1]}
s_mov_b32 s38, 0xc000c000
s_mov_b32 s39, 0xc000c000
s_mov_b64 exec, s[38:39]
ds_write_b128 v{t[1]}, {vr(AC,4)} offset:{L_FFN}
s_mov_b64 exec, -1
""")
    lds_sync(a, "K2_SPIN2", L_CNT_FFN, 4, t[2], t[3], 38)
    Gv = AC
    a(f"""
v_and_b32 v{t[1]}, 15, v2
v_lshlrev_b32 v{t[1]}, 2, v{t[1]}
""")
    for w in range(4):
        a(f"ds_read_b32 v{Gv+w}, v{t[1]} offset:{L_FFN+128*w}\nds_read_b32 v{Gv+4+w}, v{t[1]} offset:{L_FFN+128*w+64}")
    a(f"""
s_waitcnt lgkmcnt(0)
v_add_f32 v{Gv}, v{Gv}, v{Gv+1}
v_add_f32 v{Gv+2}, v{Gv+2}, v{Gv+3}
v_add_f32 v{Gv+4}, v{Gv+4}, v{Gv+5}
v_add_f32 v{Gv+6}, v{Gv+6}, v{Gv+7}
v_add_f32 v{Gv}, v{Gv}, v{Gv+2}
v_add_f32 v{Gv+4}, v{Gv+4}, v{Gv+6}
v_cvt_pk_bf16_f32 v{Gv+1}, v{Gv}, v{Gv+4}
v_lshlrev_b32 v{Gv}, 16, v{Gv+1}
v_and_b32 v{Gv+4}, 0xffff0000, v{Gv+1}
v_mul_f32 v{Gv+2}, {f32(-G.L2E)}, v{Gv}
v_exp_f32 v{Gv+2}, v{Gv+2}
v_add_f32 v{Gv+2}, 1.0, v{Gv+2}
v_rcp_f32 v{Gv+2}, v{Gv+2}
v_mul_f32 v{Gv+2}, v{Gv}, v{Gv+2}
v_cvt_pk_bf16_f32 v{Gv+2}, v{Gv+2}, v{Gv+2}
v_lshlrev_b32 v{Gv+2}, 16, v{Gv+2}
v_mul_f32 v{Gv+2}, v{Gv+2}, v{Gv+4}
v_cvt_pk_bf16_f32 v{Gv+2}, v{Gv+2}, v{Gv+2}
v_and_b32 v{Gv+2}, 0xffff, v{Gv+2}
""")
    for fi in range(16):
        a(f"v_readlane_b32 s{40+fi}, v{Gv+2}, {fi}")
    for fi in range(16):
        a(f"s_lshl_b32 s{64+fi}, s{40+fi}, 16")
    a("s_waitcnt vmcnt(0)")
    YA = AC + 8
    for fi in range(16):
        for k in range(2):
            for h in range(2):
                d = YA + 2 * k + h
                s = (40 if h == 0 else 64) + fi
                c = "0" if fi == 0 else f"v{d}"
                a(f"v_dot2_f32_bf16 v{d}, v{WD_+2*fi+k}, s{s}, {c}")
    a(f"""
s_lshl_b32 s38, s34, 12
s_add_u32 s38, s38, {G.WS_PART}
v_lshlrev_b32 v{t[0]}, 4, v{vt}
buffer_store_dwordx4 {vr(YA,4)}, v{t[0]}, s[{S_WS}:{S_WS+3}], s38 offen {G.ST}
""")
    G.stamp(a, 1, 3, 3, S_WS, 250, 84)
    a.label("K2_END")
    a("s_endpgm")
    return a, K2_LDS


def gen_k3(G):
    f32 = G.f32
    a = Asm()
    S_WS, S_OUT, S_DS = 12, 16, 20
    a(f"""
s_cmp_ge_u32 s2, 288
s_cbranch_scc1 K3_END
s_load_dwordx2 s[{S_WS}:{S_WS+1}], s[0:1], 112
s_load_dwordx2 s[{S_OUT}:{S_OUT+1}], s[0:1], 96
s_load_dwordx2 s[{S_DS}:{S_DS+1}], s[0:1], 48
v_lshrrev_b32 v1, 6, v0
v_readfirstlane_b32 s3, v1
""")
    G.srd(a, S_WS, G.WS_SIZE)
    G.srd(a, S_OUT, 4 << 20)
    G.srd(a, S_DS, 2048)
    a(f"""
s_waitcnt lgkmcnt(0)
""")
    G.stamp(a, 2, 0, 3, S_WS, 60, 60)
    a(f"""
s_cmp_lt_u32 s2, 32
s_cbranch_scc1 K3_ROW
s_sub_u32 s4, s2, 32
s_and_b32 s5, s4, 7
s_lshr_b32 s6, s4, 3
s_lshl_b32 s7, s5, 19
s_lshl_b32 s8, s6, 7
s_add_u32 s7, s7, s8
s_add_u32 s7, s7, {G.WS_OT}
s_add_u32 s8, s7, 8192
v_and_b32 v2, 31, v0
v_lshrrev_b32 v3, 5, v0
v_lshlrev_b32 v4, 14, v2
v_lshl_add_u32 v4, v3, 4, v4
v_add_u32 v5, 4096, v4
v_mov_b32 v6, 0
s_mov_b32 s9, {G.WS_ROW+6144}
buffer_load_dwordx4 v[8:11], v4, s[{S_WS}:{S_WS+3}], s7 offen
buffer_load_dwordx4 v[12:15], v5, s[{S_WS}:{S_WS+3}], s7 offen
buffer_load_dwordx4 v[16:19], v4, s[{S_WS}:{S_WS+3}], s8 offen
buffer_load_dwordx4 v[20:23], v5, s[{S_WS}:{S_WS+3}], s8 offen
buffer_load_dword v7, v6, s[{S_WS}:{S_WS+3}], s9 offen
s_lshl_b32 s7, s6, 17
s_lshl_b32 s8, s5, 8
s_add_u32 s7, s7, s8
s_add_u32 s8, s7, 4096
s_add_u32 s9, s7, 8192
s_add_u32 s10, s7, 12288
v_lshlrev_b32 v4, 14, v3
v_lshl_add_u32 v4, v2, 3, v4
s_mov_b32 s24, 0x05040100
s_mov_b32 s25, 0x07060302
s_lshl_b32 s11, s6, 6
v_lshlrev_b32 v5, 3, v3
v_add_u32 v5, s11, v5
v_mov_b32 v6, 0x7ffffff0
s_waitcnt vmcnt(0)
v_and_b32 v7, 0xffff, v7
v_sub_u32 v7, 2047, v7
v_sub_u32 v7, v7, v5
""")
    for r in range(8):
        sel = "s24" if (r & 1) == 0 else "s25"
        k = r >> 1
        a(f"""
v_perm_b32 v{24+2*r}, v{12+k}, v{8+k}, {sel}
v_perm_b32 v{25+2*r}, v{20+k}, v{16+k}, {sel}
v_cmp_eq_u32 vcc, {r}, v7
v_cndmask_b32 v{40+r}, v4, v6, vcc
""")
    for r in range(8):
        a(f"buffer_store_dwordx2 {vr(24+2*r,2)}, v{40+r}, s[{S_OUT}:{S_OUT+3}], s{7+(r>>1)} offen offset:{(r&1)*2048} {G.STO}")
    G.stamp(a, 2, 1, 3, S_WS, 60, 60)
    a(f"""
s_endpgm
K3_ROW:
v_and_b32 v2, 7, v0
v_lshrrev_b32 v3, 3, v0
v_lshlrev_b32 v4, 12, v3
v_lshl_add_u32 v4, v2, 4, v4
s_lshl_b32 s4, s2, 7
s_add_u32 s4, s4, {G.WS_PART}
""")
    for k in range(7):
        a(f"buffer_load_dwordx4 {vr(8+4*k,4)}, v4, s[{S_WS}:{S_WS+3}], s4 offen")
        if k < 6:
            a(f"s_add_u32 s4, s4, {32*4096}")
    a(f"""
v_and_b32 v5, 31, v0
v_lshlrev_b32 v5, 1, v5
s_lshl_b32 s5, s2, 6
s_add_u32 s6, s5, {G.WS_ROW}
s_add_u32 s7, s6, 4096
v_mov_b32 v6, 0
buffer_load_ushort v40, v5, s[{S_WS}:{S_WS+3}], s6 offen
buffer_load_ushort v41, v5, s[{S_WS}:{S_WS+3}], s6 offen offset:2048
buffer_load_ushort v42, v5, s[{S_WS}:{S_WS+3}], s7 offen
buffer_load_ushort v43, v5, s[{S_DS}:{S_DS+3}], s5 offen
s_mov_b32 s7, {G.WS_ROW+6144}
buffer_load_dword v44, v6, s[{S_WS}:{S_WS+3}], s7 offen
""")
    for k in range(1, 7):
        a(f"s_waitcnt vmcnt({5+6-k})")
        for i in range(4):
            a(f"v_add_f32 v{8+i}, v{8+i}, v{8+4*k+i}")
    a(f"""
v_lshlrev_b32 v7, 4, v0
ds_write_b128 v7, v[8:11]
s_waitcnt lgkmcnt(0)
s_barrier
s_cmp_lg_u32 s3, 0
s_cbranch_scc1 K3_END
v_and_b32 v7, 31, v0
v_lshlrev_b32 v7, 2, v7
v_lshrrev_b32 v1, 5, v0
v_lshl_add_u32 v7, v1, 11, v7
""")
    for k in range(16):
        a(f"ds_read_b32 v{8+k}, v7 offset:{128*k}")
    a("s_waitcnt lgkmcnt(0)")
    for n in (8, 4, 2, 1):
        for k in range(n):
            a(f"v_add_f32 v{8+k}, v{8+k}, v{8+k+n}")
    a(f"""
v_mov_b32 v9, v8
v_permlane32_swap_b32 v8, v9
v_add_f32 v8, v8, v9
s_waitcnt vmcnt(0)
v_readfirstlane_b32 s8, v44
s_and_b32 s9, s8, 0xffff
s_sub_u32 s9, 2047, s9
s_lshr_b32 s8, s8, 16
s_xor_b32 s10, s8, 0xffff
s_and_b32 s11, s8, 0x7fff
s_cmp_ge_u32 s8, 0x8000
s_cselect_b32 s8, s11, s10
s_lshl_b32 s8, s8, 16
v_mov_b32 v10, s8
v_mul_f32 v10, {f32(-G.L2E)}, v10
v_exp_f32 v10, v10
v_add_f32 v10, 1.0, v10
v_rcp_f32 v10, v10
v_cvt_pk_bf16_f32 v11, v8, v10
v_lshlrev_b32 v8, 16, v11
v_and_b32 v10, 0xffff0000, v11
v_mul_f32 v8, v8, v10
v_lshlrev_b32 v40, 16, v40
v_lshlrev_b32 v41, 16, v41
v_lshlrev_b32 v42, 16, v42
v_lshlrev_b32 v43, 16, v43
v_mul_f32 v12, v42, v43
v_cvt_pk_bf16_f32 v11, v8, v12
v_lshlrev_b32 v8, 16, v11
v_and_b32 v12, 0xffff0000, v11
; v8 = yy, v12 = t1
v_add_f32 v8, v42, v8
v_add_f32 v12, v40, v12
v_cvt_pk_bf16_f32 v11, v8, v12
v_lshlrev_b32 v8, 16, v11
v_and_b32 v12, 0xffff0000, v11
; v8 = o2, v12 = a
v_add_f32 v12, v41, v12
v_cvt_pk_bf16_f32 v11, v12, v12
v_lshlrev_b32 v12, 16, v11
v_add_f32 v12, v12, v8
v_cvt_pk_bf16_f32 v11, v12, v12
s_lshl_b32 s9, s9, 11
s_add_u32 s9, s9, s5
s_mov_b32 s10, -1
s_mov_b32 s11, 0
s_mov_b64 exec, s[10:11]
buffer_store_short v11, v5, s[{S_OUT}:{S_OUT+3}], s9 offen
s_mov_b64 exec, -1
""")
    G.stamp(a, 2, 1, 3, S_WS, 60, 60)
    a.label("K3_END")
    a("s_endpgm")
    return a
```

```python
import sys, struct, math
import numpy as np
from asmlib import *

OUT = sys.argv[1] if len(sys.argv) > 1 else "parallel_sum__ssm_conv_s4d__moe_arch_mod__prompt.s"
STAMP = "--stamp" in sys.argv
PREF = 0
for a_ in sys.argv:
    if a_.startswith("--pref="):
        PREF = int(a_.split("=")[1])


def f32(x):
    return "0x%08x" % struct.unpack("<I", struct.pack("<f", x))[0]


L2E = math.log2(math.e)
L2E_HI = float(np.float32(math.floor(L2E * 2 ** 15) / 2 ** 15))
L2E_LO = float(np.float32(L2E - L2E_HI))
INV2PI = 1.0 / (2 * math.pi)
INV2PI_HI = float(np.float32(INV2PI))
INV2PI_LO = float(np.float32(INV2PI - INV2PI_HI))

WS_XT = 0
WS_TAB = 4 << 20
WS_STAT = 6 << 20
WS_KEY = (6 << 20) + (64 << 10)
WS_PART = 7 << 20
WS_ROW = 8 << 20
WS_STAMP = 9 << 20
WS_SIZE = 16 << 20
ST = 'sc1'
STO = 'sc1'
for a_ in sys.argv:
    if a_.startswith('--sto='):
        STO = a_.split('=')[1]
    if a_.startswith('--st='):
        ST = a_.split('=')[1]
TB_TT = 1120
TB_T2 = 1248
TB_T3 = 1632
TB_KS = 1888
WS_OT = 10 << 20

FMT = "0x20000"


def srd(a, s, nbytes):
    a(f"s_mov_b32 s{s+2}, {nbytes}\ns_mov_b32 s{s+3}, {FMT}")


def wave_reduce(a, op, regs, zero_ok=True):
    for sh in (1, 2, 4, 8):
        for r in regs:
            a(f"{op}_dpp v{r}, v{r}, v{r} row_shr:{sh} row_mask:0xf bank_mask:0xf bound_ctrl:0")
    for r in regs:
        a(f"{op}_dpp v{r}, v{r}, v{r} row_bcast:15 row_mask:0xa bank_mask:0xf")
    for r in regs:
        a(f"{op}_dpp v{r}, v{r}, v{r} row_bcast:31 row_mask:0xc bank_mask:0xf")


def stamp(a, kid, slot, swave, sws, tmpv, stmp):
    if not STAMP:
        return
    a(f"""
s_memrealtime s[{stmp}:{stmp+1}]
s_lshl_b32 s{stmp+2}, s2, 8
s_lshl_b32 s{stmp+3}, s{swave}, 5
s_add_u32 s{stmp+2}, s{stmp+2}, s{stmp+3}
s_add_u32 s{stmp+2}, s{stmp+2}, {WS_STAMP + kid*0x40000 + slot*4}
s_waitcnt lgkmcnt(0)
v_mov_b32 v{tmpv}, s{stmp}
v_mov_b32 v{tmpv+1}, 0
buffer_store_dword v{tmpv}, v{tmpv+1}, s[{sws}:{sws+3}], s{stmp+2} offen
""")


def exp_bf16(a, dst, x, t0, t1, s_lo):
    a(f"""
v_mul_f32 v{t0}, {f32(L2E_HI)}, v{x}
v_rndne_f32 v{t1}, v{t0}
v_sub_f32 v{t0}, v{t0}, v{t1}
v_fma_f32 v{t0}, v{x}, s{s_lo}, v{t0}
v_exp_f32 v{t0}, v{t0}
v_cvt_i32_f32 v{t1}, v{t1}
v_ldexp_f32 v{dst}, v{t0}, v{t1}
""")


KG_ROWB = 528
KG_WAVEB = 58 * KG_ROWB
K1_LDS = 4 * KG_WAVEB


def gen_k1():
    a = Asm()
    S_X, S_WS, S_WR, S_LA, S_AI, S_CR, S_CI, S_DT, S_WG, S_WU, S_WD = 8, 12, 16, 20, 24, 28, 32, 36, 40, 44, 48
    a(f"""
s_cmp_ge_u32 s2, 256
s_cbranch_scc1 K1_END
s_load_dwordx2 s[{S_X}:{S_X+1}], s[0:1], 0
s_load_dwordx2 s[{S_WS}:{S_WS+1}], s[0:1], 112
s_load_dwordx2 s[{S_WR}:{S_WR+1}], s[0:1], 64
s_load_dwordx2 s[{S_LA}:{S_LA+1}], s[0:1], 8
s_load_dwordx2 s[{S_AI}:{S_AI+1}], s[0:1], 16
s_load_dwordx2 s[{S_CR}:{S_CR+1}], s[0:1], 24
s_load_dwordx2 s[{S_CI}:{S_CI+1}], s[0:1], 32
s_load_dwordx2 s[{S_DT}:{S_DT+1}], s[0:1], 40
s_load_dwordx2 s[{S_WG}:{S_WG+1}], s[0:1], 72
s_load_dwordx2 s[{S_WU}:{S_WU+1}], s[0:1], 80
s_load_dwordx2 s[{S_WD}:{S_WD+1}], s[0:1], 88
v_lshrrev_b32 v1, 6, v0
v_and_b32 v2, 63, v0
v_readfirstlane_b32 s3, v1
""")
    srd(a, S_X, 4 << 20)
    srd(a, S_WS, WS_SIZE)
    srd(a, S_WR, 2048)
    for s in (S_LA, S_AI, S_CR, S_CI):
        srd(a, s, 262144)
    srd(a, S_DT, 2048)
    for s in (S_WG, S_WU, S_WD):
        srd(a, s, 7340032)
    a(f"""
s_waitcnt lgkmcnt(0)
""")
    stamp(a, 0, 0, 3, S_WS, 250, 60)
    a(f"""
s_cmp_ge_u32 s3, 4
s_cbranch_scc1 K1_KGEN
""")

    def prefetch(a, wave_lo):
        if PREF == 0:
            return
        vt, va, vb, vd = 240, 241, 242, 243
        a(f"""
s_and_b32 s56, s2, 7
s_lshr_b32 s57, s2, 3
v_cmp_le_u32 vcc, 224, v0
v_subrev_u32 v{vt}, 224, v0
v_cndmask_b32 v{vt}, v0, v{vt}, vcc
v_mul_u32_u24 v{va}, 9363, v{vt}
v_lshrrev_b32 v{va}, 16, v{va}
v_mul_u32_u24 v{vb}, 7, v{va}
v_sub_u32 v{vb}, v{vt}, v{vb}
v_mul_u32_u24 v{va}, 7168, v{va}
v_lshl_add_u32 v{va}, v{vb}, 7, v{va}
s_mul_i32 s58, s57, {32*7168}
s_mul_i32 s59, s56, 896
s_add_u32 s58, s58, s59
v_cmp_gt_u32 vcc, 448, v0
v_mov_b32 v{vd}, 0x7ffffff0
v_cndmask_b32 v{va}, v{vd}, v{va}, vcc
v_cmp_gt_u32 vcc, 224, v0
v_cndmask_b32 v{vb}, v{vd}, v{va}, vcc
v_cndmask_b32 v{va}, v{va}, v{vd}, vcc
""")
        if PREF & 1:
            a(f"buffer_load_dword v244, v{vb}, s[{S_WG}:{S_WG+3}], s58 offen nt")
        if PREF & 2:
            a(f"buffer_load_dword v245, v{va}, s[{S_WU}:{S_WU+3}], s58 offen nt")
        if PREF & 4:
            a(f"""
s_mul_i32 s58, s56, 448
s_mul_i32 s59, s57, 14
s_add_u32 s58, s58, s59
s_lshl_b32 s58, s58, 11
v_lshlrev_b32 v{va}, 7, v0
v_cmp_gt_u32 vcc, 224, v0
v_cndmask_b32 v{va}, v{vd}, v{va}, vcc
buffer_load_dword v246, v{va}, s[{S_WD}:{S_WD+3}], s58 offen nt
""")

    NPF = bin(PREF).count("1")
    XA0, XB0, XA1, XB1, WRA, WRB = 4, 8, 12, 16, 20, 24
    a(f"""
s_lshl_b32 s4, s2, 3
s_lshl_b32 s5, s3, 1
s_add_u32 s4, s4, s5
s_lshl_b32 s5, s4, 11
v_lshlrev_b32 v3, 4, v2
buffer_load_dwordx4 {vr(XA0,4)}, v3, s[{S_X}:{S_X+3}], s5 offen nt
buffer_load_dwordx4 {vr(XB0,4)}, v3, s[{S_X}:{S_X+3}], s5 offen offset:1024 nt
buffer_load_dwordx4 {vr(XA1,4)}, v3, s[{S_X}:{S_X+3}], s5 offen offset:2048 nt
buffer_load_dwordx4 {vr(XB1,4)}, v3, s[{S_X}:{S_X+3}], s5 offen offset:3072 nt
buffer_load_dwordx4 {vr(WRA,4)}, v3, s[{S_WR}:{S_WR+3}], 0 offen nt
buffer_load_dwordx4 {vr(WRB,4)}, v3, s[{S_WR}:{S_WR+3}], 0 offen offset:1024 nt
""")
    prefetch(a, 0)
    F = [32, 48]
    a(f"s_waitcnt vmcnt({2+NPF})")
    for row, src in ((0, 4), (1, 12)):
        for k in range(8):
            a(f"v_lshlrev_b32 v{F[row]+2*k}, 16, v{src+k}\nv_and_b32 v{F[row]+2*k+1}, 0xffff0000, v{src+k}")
    SUM = [64, 65]
    T = [66, 74]
    for lvl in range(1):
        for row in (0, 1):
            for k in range(8):
                a(f"v_add_f32 v{T[row]+k}, v{F[row]+2*k}, v{F[row]+2*k+1}")
    for n in (4, 2, 1):
        for row in (0, 1):
            for k in range(n):
                dst = SUM[row] if n == 1 else T[row] + k
                a(f"v_add_f32 v{dst}, v{T[row]+k}, v{T[row]+k+n}")
    wave_reduce(a, "v_add_f32", SUM)
    a(f"v_mul_f32 v{SUM[0]}, {f32(1.0/1024)}, v{SUM[0]}\nv_mul_f32 v{SUM[1]}, {f32(1.0/1024)}, v{SUM[1]}")
    a(f"v_readlane_b32 s6, v{SUM[0]}, 63\nv_readlane_b32 s7, v{SUM[1]}, 63")
    SQ = [66, 74]
    D_ = [82, 83]
    for k in range(16):
        for row in (0, 1):
            a(f"v_subrev_f32 v{D_[row]}, s{6+row}, v{F[row]+k}")
            if k < 4:
                a(f"v_mul_f32 v{SQ[row]+k}, v{D_[row]}, v{D_[row]}")
            else:
                a(f"v_fmac_f32 v{SQ[row]+(k&3)}, v{D_[row]}, v{D_[row]}")
    for row in (0, 1):
        a(f"v_add_f32 v{SQ[row]}, v{SQ[row]}, v{SQ[row]+1}\nv_add_f32 v{SQ[row]+2}, v{SQ[row]+2}, v{SQ[row]+3}")
    for row in (0, 1):
        a(f"v_add_f32 v{SUM[row]}, v{SQ[row]}, v{SQ[row]+2}")
    wave_reduce(a, "v_add_f32", SUM)
    a(f"""
v_mul_f32 v64, {f32(1.0/1024)}, v64
v_mul_f32 v65, {f32(1.0/1024)}, v65
v_cvt_pk_bf16_f32 v66, v64, v65
v_lshlrev_b32 v64, 16, v66
v_and_b32 v65, 0xffff0000, v66
v_add_f32 v64, {f32(1e-5)}, v64
v_add_f32 v65, {f32(1e-5)}, v65
v_cvt_pk_bf16_f32 v66, v64, v65
v_lshlrev_b32 v64, 16, v66
v_and_b32 v65, 0xffff0000, v66
v_sqrt_f32 v64, v64
v_sqrt_f32 v65, v65
v_cvt_pk_bf16_f32 v66, v64, v65
v_lshlrev_b32 v64, 16, v66
v_and_b32 v65, 0xffff0000, v66
v_rcp_f32 v64, v64
v_rcp_f32 v65, v65
v_mov_b32 v67, s6
v_mov_b32 v68, s7
v_cvt_pk_bf16_f32 v66, v67, v68
v_readlane_b32 s52, v64, 63
v_readlane_b32 s53, v65, 63
v_readfirstlane_b32 s54, v66
s_lshl_b32 s6, s54, 16
s_and_b32 s7, s54, 0xffff0000
""")
    a(f"s_waitcnt vmcnt({NPF})")
    RA = [64, 65]
    a("v_mov_b32 v64, 0\nv_mov_b32 v65, 0")
    for k in range(8):
        for row in (0, 1):
            f0, f1 = F[row] + 2 * k, F[row] + 2 * k + 1
            t = 66 + row
            a(f"""
v_subrev_f32 v{f0}, s{6+row}, v{f0}
v_subrev_f32 v{f1}, s{6+row}, v{f1}
v_cvt_pk_bf16_f32 v{t}, v{f0}, v{f1}
v_lshlrev_b32 v{f0}, 16, v{t}
v_and_b32 v{f1}, 0xffff0000, v{t}
v_mul_f32 v{f0}, s{52+row}, v{f0}
v_mul_f32 v{f1}, s{52+row}, v{f1}
v_cvt_pk_bf16_f32 v{t}, v{f0}, v{f1}
v_dot2_f32_bf16 v{RA[row]}, v{t}, v{WRA+k}, v{RA[row]}
""")
    wave_reduce(a, "v_add_f32", RA)
    a(f"""
v_cvt_pk_bf16_f32 v66, v64, v65
v_readlane_b32 s54, v66, 63
s_and_b32 s55, s54, 0xffff
s_lshr_b32 s54, s54, 16
s_xor_b32 s56, s55, 0xffff
s_or_b32 s57, s55, 0x8000
s_cmp_ge_u32 s55, 0x8000
s_cselect_b32 s55, s56, s57
s_xor_b32 s56, s54, 0xffff
s_or_b32 s57, s54, 0x8000
s_cmp_ge_u32 s54, 0x8000
s_cselect_b32 s54, s56, s57
s_lshl_b32 s55, s55, 16
s_lshl_b32 s54, s54, 16
s_sub_u32 s56, 2047, s4
s_or_b32 s55, s55, s56
s_sub_u32 s56, 2046, s4
s_or_b32 s54, s54, s56
s_max_u32 s54, s54, s55
v_mov_b32 v4, s6
v_mov_b32 v5, s52
v_mov_b32 v6, s7
v_mov_b32 v7, s53
v_mov_b32 v8, s54
v_mov_b32 v9, 0
s_lshl_b32 s5, s4, 3
s_add_u32 s5, s5, {WS_STAT}
s_lshl_b32 s55, s4, 1
s_add_u32 s55, s55, {WS_KEY}
s_mov_b64 exec, 1
buffer_store_dwordx4 v[4:7], v9, s[{S_WS}:{S_WS+3}], s5 offen {ST}
buffer_store_dword v8, v9, s[{S_WS}:{S_WS+3}], s55 offen {ST}
""")
    stamp(a, 0, 1, 3, S_WS, 250, 60)
    a("s_endpgm")

    a.label("K1_KGEN")
    R = Regs(4, 240)
    a(f"""
s_sub_u32 s3, s3, 4
s_and_b32 s4, s2, 7
s_lshl_b32 s4, s4, 5
s_lshr_b32 s5, s2, 3
s_add_u32 s4, s4, s5
s_lshl_b32 s4, s4, 2
s_add_u32 s4, s4, s3
s_lshl_b32 s5, s4, 8
s_lshl_b32 s6, s4, 1
v_lshlrev_b32 v3, 2, v2
""")
    pLA, pAI, pCR, pCI, pDT = [R.alloc() for _ in range(5)]
    vz = R.alloc()
    a(f"""
v_mov_b32 v{vz}, 0
buffer_load_dword v{pLA}, v3, s[{S_LA}:{S_LA+3}], s5 offen nt
buffer_load_dword v{pAI}, v3, s[{S_AI}:{S_AI+3}], s5 offen nt
buffer_load_dword v{pCR}, v3, s[{S_CR}:{S_CR+3}], s5 offen nt
buffer_load_dword v{pCI}, v3, s[{S_CI}:{S_CI+3}], s5 offen nt
buffer_load_ushort v{pDT}, v{vz}, s[{S_DT}:{S_DT+3}], s6 offen nt
""")
    XR = R.alloc(16, 2)
    vxo = R.alloc()
    a(f"""
s_lshr_b32 s7, s2, 3
s_lshl_b32 s7, s7, 17
s_and_b32 s52, s2, 7
s_lshl_b32 s52, s52, 8
s_add_u32 s7, s7, s52
s_lshl_b32 s52, s3, 6
s_add_u32 s7, s7, s52
s_add_u32 s52, s7, 4096
s_add_u32 s53, s7, 8192
s_add_u32 s54, s7, 12288
v_and_b32 v{vxo}, 7, v2
v_lshlrev_b32 v{vxo}, 14, v{vxo}
v_and_b32 v1, 56, v2
v_add_u32 v{vxo}, v{vxo}, v1
""")
    for r in range(8):
        so = ["s7", "s52", "s53", "s54"][r >> 1]
        a(f"buffer_load_dwordx2 {vr(XR+2*r,2)}, v{vxo}, s[{S_X}:{S_X+3}], {so} offen offset:{(r&1)*2048} nt")
    prefetch(a, 4)
    a(f"""
s_mov_b32 s55, {f32(L2E_LO)}
s_mov_b32 s52, 0x05040100
s_mov_b32 s53, 0x07060302
""")
    a(f"s_waitcnt vmcnt({8+NPF})")
    t = [R.alloc() for _ in range(8)]
    dt = R.alloc()
    la = R.alloc(2, 2); ai = R.alloc(2, 2); cr = R.alloc(2, 2); ci = R.alloc(2, 2)
    for (p, d) in ((pLA, la), (pAI, ai), (pCR, cr), (pCI, ci)):
        a(f"v_lshlrev_b32 v{d}, 16, v{p}\nv_and_b32 v{d+1}, 0xffff0000, v{p}")
    a(f"v_lshlrev_b32 v{dt}, 16, v{pDT}")
    a(f"""
s_mov_b32 s56, {f32(-128.0)}
v_mov_b32 v{t[7]}, {f32(128.0)}
v_med3_f32 v{dt}, v{dt}, s56, v{t[7]}
v_med3_f32 v{la}, v{la}, s56, v{t[7]}
v_med3_f32 v{la+1}, v{la+1}, s56, v{t[7]}
""")
    exp_bf16(a, dt, dt, t[0], t[1], 55)
    exp_bf16(a, la, la, t[2], t[3], 55)
    exp_bf16(a, la + 1, la + 1, t[4], t[5], 55)
    a(f"""
v_cvt_pk_bf16_f32 v{t[0]}, v{dt}, v{dt}
v_cvt_pk_bf16_f32 v{t[1]}, v{la}, v{la+1}
v_lshlrev_b32 v{dt}, 16, v{t[0]}
v_lshlrev_b32 v{la}, 16, v{t[1]}
v_and_b32 v{la+1}, 0xffff0000, v{t[1]}
""")
    for k in (0, 1):
        a(f"""
v_mul_f32 v{la+k}, v{la+k}, v{dt}
v_mul_f32 v{ai+k}, v{ai+k}, v{dt}
v_mul_f32 v{cr+k}, v{cr+k}, v{dt}
v_mul_f32 v{ci+k}, v{ci+k}, v{dt}
v_mul_f32 v{la+k}, {f32(-L2E)}, v{la+k}
""")
    mx = R.alloc()
    a(f"""
v_max_f32 v{mx}, |v{cr}|, |v{cr+1}|
v_max3_f32 v{mx}, |v{ci}|, |v{ci+1}|, v{mx}
""")
    wave_reduce(a, "v_max_f32", [mx])
    wh = R.alloc(2, 2); wl = R.alloc(2, 2)
    a(f"s_mov_b32 s56, {f32(INV2PI_HI)}\ns_mov_b32 s57, {f32(INV2PI_LO)}")
    for k in (0, 1):
        a(f"""
v_mul_f32 v{wh+k}, s56, v{ai+k}
v_fma_f32 v{wl+k}, v{ai+k}, s56, -v{wh+k}
v_fma_f32 v{wl+k}, v{ai+k}, s57, v{wl+k}
""")
    a(f"""
v_frexp_exp_i32_f32 v{mx}, v{mx}
v_readlane_b32 s58, v{mx}, 63
s_max_i32 s58, s58, -100
s_min_i32 s58, s58, 120
s_sub_i32 s59, 7, s58
s_sub_i32 s58, s58, 6
""")
    G0 = R.alloc(4, 2)
    for k in (0, 1):
        a(f"v_ldexp_f32 v{G0+k}, v{cr+k}, s59\nv_ldexp_f32 v{G0+2+k}, v{ci+k}, s59")
    E = {}
    for e in (1, 8, 128):
        E[e] = R.alloc(4, 2)
        for k in (0, 1):
            a(f"""
v_mul_f32 v{t[0+4*k]}, {f32(float(e))}, v{la+k}
v_mul_f32 v{t[1+4*k]}, {f32(float(e))}, v{wh+k}
v_exp_f32 v{t[0+4*k]}, v{t[0+4*k]}
v_fract_f32 v{t[1+4*k]}, v{t[1+4*k]}
v_mul_f32 v{t[2+4*k]}, {f32(float(e))}, v{wl+k}
v_add_f32 v{t[1+4*k]}, v{t[1+4*k]}, v{t[2+4*k]}
v_cos_f32 v{t[2+4*k]}, v{t[1+4*k]}
v_sin_f32 v{t[3+4*k]}, v{t[1+4*k]}
""")
        for k in (0, 1):
            a(f"""
v_mul_f32 v{E[e]+k}, v{t[0+4*k]}, v{t[2+4*k]}
v_mul_f32 v{E[e]+2+k}, v{t[0+4*k]}, v{t[3+4*k]}
""")
    a(f"s_waitcnt vmcnt({NPF})")
    XO = R.alloc(16, 4)
    for c in range(4):
        for rp in range(4):
            sel = "s52" if (c & 1) == 0 else "s53"
            a(f"v_perm_b32 v{XO+4*c+rp}, v{XR+2*(2*rp+1)+(c>>1)}, v{XR+2*(2*rp)+(c>>1)}, {sel}")
    a(f"""
s_and_b32 s7, s2, 7
s_lshl_b32 s7, s7, 19
s_lshl_b32 s54, s3, 17
s_add_u32 s7, s7, s54
s_lshr_b32 s54, s2, 3
s_lshl_b32 s54, s54, 7
s_add_u32 s7, s7, s54
s_add_u32 s54, s7, 8192
v_lshrrev_b32 v{vxo}, 3, v2
v_lshlrev_b32 v{vxo}, 14, v{vxo}
v_and_b32 v1, 7, v2
v_lshl_add_u32 v{vxo}, v1, 4, v{vxo}
v_add_u32 v1, 4096, v{vxo}
""")
    for c in range(4):
        a(f"buffer_store_dwordx4 {vr(XO+4*c,4)}, v{vxo if (c&1)==0 else 1}, s[{S_WS}:{S_WS+3}], {'s7' if c<2 else 's54'} offen {ST}")
    vw = R.alloc()
    a(f"""
s_mul_i32 s54, s3, {KG_WAVEB}
v_lshlrev_b32 v{vw}, 3, v2
v_add_u32 v{vw}, s54, v{vw}
""")
    TM = [R.alloc(2, 2) for _ in range(4)]
    PK = [R.alloc(2, 2) for _ in range(4)]
    cnt = [0]

    def cmul(D, X, Ee):
        i = cnt[0] & 1
        t0, t1 = TM[2 * i], TM[2 * i + 1]
        cnt[0] += 1
        a(f"""
v_pk_mul_f32 {vr(t0,2)}, {vr(X+2,2)}, {vr(Ee+2,2)}
v_pk_mul_f32 {vr(t1,2)}, {vr(X+2,2)}, {vr(Ee,2)}
v_pk_fma_f32 {vr(D,2)}, {vr(X,2)}, {vr(Ee,2)}, {vr(t0,2)} neg_lo:[0,0,1] neg_hi:[0,0,1]
v_pk_fma_f32 {vr(D+2,2)}, {vr(X,2)}, {vr(Ee+2,2)}, {vr(t1,2)}
""")

    pc = [0]

    def put(X, slot, neg):
        p = PK[pc[0] & 3]
        pc[0] += 1
        n = "-" if neg else ""
        a(f"""
v_cvt_pk_f16_f32 v{p}, v{X}, {n}v{X+2}
v_cvt_pk_f16_f32 v{p+1}, v{X+1}, {n}v{X+3}
ds_write_b64 v{vw}, {vr(p,2)} offset:{slot*KG_ROWB}
""")

    one = R.alloc(2, 2)
    a(f"v_mov_b32 v{one}, 0x3c00\nv_mov_b32 v{one+1}, 0x3c00\nds_write_b64 v{vw}, {vr(one,2)} offset:0")
    Gs = {0: G0}
    for ex in list(range(1, 8)):
        Gs[ex] = R.alloc(4, 2)
    La, Lb = R.alloc(4, 2), R.alloc(4, 2)
    put(E[8], 1, False)
    put(G0, 16, True)
    Lcur = E[8]
    for j in range(2, 16):
        Ln = La if (j & 1) == 0 else Lb
        cmul(Ln, Lcur, E[8])
        if j - 1 <= 7:
            cmul(Gs[j - 1], Gs[j - 2], E[1])
            put(Gs[j - 1], 16 + j - 1, True)
        put(Ln, j, False)
        Lcur = Ln
    Hs = {ex: R.alloc(4, 2) for ex in range(8)}
    for ex in range(8):
        cmul(Hs[ex], Gs[ex], E[128])
    for ex in range(8):
        put(Hs[ex], 24 + ex, True)
    for ex in (0, 2, 4, 6):
        cmul(Gs[ex], Hs[ex], E[128])
    cmul(Gs[1], Gs[0], E[8])
    for i, ex in enumerate((0, 2, 4, 6)):
        put(Gs[ex], 32 + i, True)
    put(Gs[1], 36, True)
    for ex in (0, 2, 4, 6, 1):
        cmul(Hs[ex], Gs[ex], E[128])
    for i, ex in enumerate((0, 2, 4, 6, 1)):
        put(Hs[ex], 37 + i, True)
    ca, cb = Hs[4], Hs[1]
    banks = [(Gs[2], Gs[3]), (Gs[4], Gs[5])]
    for i in range(4):
        na, nb = banks[i & 1]
        cmul(na, ca, E[128])
        cmul(nb, cb, E[128])
        put(na, 42 + 2 * i, True)
        put(nb, 42 + 2 * i + 1, True)
        ca, cb = na, nb
    E256 = Hs[0]
    cmul(E256, E[128], E[128])
    x0, x1 = Hs[2], Hs[3]
    cmul(x0, cb, E[128])
    cmul(x1, cb, E256)
    put(x0, 50, True)
    put(x1, 51, True)
    banks = [(Hs[5], Hs[6]), (Hs[2], Hs[3])]
    for i in range(3):
        n0, n1 = banks[i & 1]
        cmul(n0, x0, E256)
        cmul(n1, x1, E256)
        put(n0, 52 + 2 * i, True)
        put(n1, 53 + 2 * i, True)
        x0, x1 = n0, n1
    vi, vq = R.alloc(), R.alloc()
    aL, aA, aB, aC = [R.alloc() for _ in range(4)]
    a(f"""
v_and_b32 v{vi}, 15, v2
v_lshrrev_b32 v{vq}, 4, v2
v_lshlrev_b32 v{t[0]}, 4, v{vq}
v_add_u32 v{t[0]}, s54, v{t[0]}
v_mul_u32_u24 v{t[1]}, {KG_ROWB}, v{vi}
v_add_u32 v{aL}, v{t[0]}, v{t[1]}
v_add_u32 v{aA}, {16*KG_ROWB}, v{aL}
v_add_u32 v{aC}, {42*KG_ROWB}, v{aL}
v_and_b32 v{t[2]}, 7, v{vi}
v_lshlrev_b32 v{t[2]}, 2, v{t[2]}
s_mov_b32 s56, 0x43222100
v_lshrrev_b32 v{t[2]}, v{t[2]}, s56
v_and_b32 v{t[2]}, 15, v{t[2]}
v_lshrrev_b32 v{t[3]}, 3, v{vi}
v_mul_u32_u24 v{t[3]}, 5, v{t[3]}
v_add3_u32 v{t[2]}, v{t[2]}, v{t[3]}, 32
v_mul_u32_u24 v{t[2]}, {KG_ROWB}, v{t[2]}
v_add_u32 v{aB}, v{t[0]}, v{t[2]}
""")
    R2 = Regs(100, 240)
    assert R.hi <= 240
    base = (R.n + 3) // 4 * 4
    FL = [XR + 4 * s for s in range(4)] + [XO + 4 * s for s in range(4)]
    FA = [base + 4 * s for s in range(8)]
    base += 32
    assert base + 16 <= 240, base
    DA, DB, DC, DCT = base, base + 4, base + 8, base + 12
    a("s_waitcnt lgkmcnt(0)")
    for s in range(8):
        a(f"ds_read_b128 {vr(FL[s],4)}, v{aL} offset:{64*s}")
    for s in range(8):
        a(f"ds_read_b128 {vr(FA[s],4)}, v{aA} offset:{64*s}")
    for s in range(8):
        a(f"s_waitcnt lgkmcnt({7-s})")
        c = "0" if s == 0 else vr(DA, 4)
        a(f"v_mfma_f32_16x16x32_f16 {vr(DA,4)}, {vr(FA[s],4)}, {vr(FL[s],4)}, {c}")
    FB = [Gs[1] + 0] * 8
    blk = sorted(list(Gs.values()) + list(Hs.values()))
    FBs = blk[:8]
    FCs = blk[8:16]
    for s in range(8):
        a(f"ds_read_b128 {vr(FBs[s],4)}, v{aB} offset:{64*s}")
    for s in range(8):
        a(f"ds_read_b128 {vr(FCs[s],4)}, v{aC} offset:{64*s}")
    for s in range(8):
        a(f"s_waitcnt lgkmcnt({15-s})")
        c = "0" if s == 0 else vr(DB, 4)
        a(f"v_mfma_f32_16x16x32_f16 {vr(DB,4)}, {vr(FBs[s],4)}, {vr(FL[s],4)}, {c}")
    for s in range(8):
        a(f"s_waitcnt lgkmcnt({7-s})")
        c = "0" if s == 0 else vr(DC, 4)
        a(f"v_mfma_f32_16x16x32_f16 {vr(DC,4)}, {vr(FCs[s],4)}, {vr(FL[s],4)}, {c}")
        c = "0" if s == 0 else vr(DCT, 4)
        a(f"v_mfma_f32_16x16x32_f16 {vr(DCT,4)}, {vr(FL[s],4)}, {vr(FCs[s],4)}, {c}")
    P = FA[0]
    a(f"""
s_lshl_b32 s5, s4, 11
s_add_u32 s5, s5, {WS_TAB}
v_lshlrev_b32 v{t[0]}, 4, v{vi}
v_and_b32 v{t[1]}, 1, v{vq}
v_lshl_add_u32 v{t[0]}, v{t[1]}, 3, v{t[0]}
v_lshrrev_b32 v{t[1]}, 1, v{vq}
v_lshl_add_u32 v{t[0]}, v{t[1]}, 8, v{t[0]}
v_add_u32 v{t[0]}, s54, v{t[0]}
v_lshlrev_b32 v{t[1]}, 2, v{vi}
v_lshl_add_u32 v{t[1]}, v{vq}, 7, v{t[1]}
v_add_u32 v{t[1]}, s54, v{t[1]}
v_lshlrev_b32 v{t[2]}, 5, v{vi}
v_lshl_add_u32 v{t[2]}, v{vq}, 3, v{t[2]}
v_add_u32 v{t[2]}, s54, v{t[2]}
v_lshlrev_b32 v{t[7]}, 4, v2
v_add_u32 v{t[4]}, 1024, v{t[7]}
v_cmp_le_u32 vcc, 1, v2
v_cndmask_b32 v{t[3]}, v{t[7]}, v{t[4]}, vcc
v_add_u32 v{t[4]}, 64, v{t[3]}
v_cmp_le_u32 vcc, 2, v2
v_cndmask_b32 v{t[3]}, v{t[3]}, v{t[4]}, vcc
v_add_u32 v{t[4]}, 256, v{t[3]}
v_cmp_le_u32 vcc, 10, v2
v_cndmask_b32 v{t[3]}, v{t[3]}, v{t[4]}, vcc
v_add_u32 v{t[3]}, s54, v{t[3]}
v_add_u32 v{aL}, s54, v{t[7]}
v_mov_b32 v{t[6]}, 1.0
v_ldexp_f32 v{t[6]}, v{t[6]}, s58
v_mov_b32 v{P+10}, 0
v_mov_b32 v{P+11}, 0
v_cvt_pk_f16_f32 v{P}, v{DA}, v{DA+1}
v_cvt_pk_f16_f32 v{P+1}, v{DA+2}, v{DA+3}
ds_write_b64 v{t[0]}, {vr(P,2)} offset:16
v_cvt_pk_f16_f32 v{P+2}, v{DB}, v{DB+1}
v_cvt_pk_f16_f32 v{P+3}, v{DB+2}, v{DB+3}
ds_write_b64 v{t[0]}, {vr(P+2,2)} offset:528
v_readlane_b32 s56, v{P+3}, 63
v_cvt_pk_f16_f32 v{P+4}, v{DC}, v{DC+1}
v_cvt_pk_f16_f32 v{P+5}, v{DC+2}, v{DC+3}
v_cvt_pk_f16_f32 v{P+6}, v{DCT}, v{DCT+1}
v_cvt_pk_f16_f32 v{P+7}, v{DCT+2}, v{DCT+3}
s_lshr_b32 s57, s56, 16
s_and_b32 s56, s56, 0xffff0000
s_or_b32 s56, s56, s57
v_mov_b32 v{t[4]}, s57
v_mov_b32 v{t[5]}, s56
v_cmp_eq_u32 vcc, 1, v2
v_cndmask_b32 v{P+8}, 0, v{t[5]}, vcc
v_cndmask_b32 v{P+9}, 0, v{t[4]}, vcc
s_mov_b32 s56, -1
s_mov_b32 s57, 0
s_mov_b64 exec, s[56:57]
ds_write_b32 v{t[1]}, v{P+4} offset:{TB_T2}
ds_write_b32 v{t[1]}, v{P+5} offset:{TB_T2+64}
s_mov_b32 s56, 0xff00ff00
s_mov_b32 s57, 0xff00ff00
s_mov_b64 exec, s[56:57]
ds_write_b64 v{t[2]}, {vr(P+6,2)} offset:{TB_T3-256}
s_mov_b64 exec, 0x3ffff
ds_write_b128 v{t[3]}, {vr(P+8,4)}
s_mov_b64 exec, 1
ds_write_b32 v{aL}, v{t[6]} offset:{TB_KS}
s_mov_b64 exec, -1
ds_read_b128 {vr(P+12,4)}, v{aL}
ds_read_b128 {vr(P+16,4)}, v{aL} offset:1024
s_waitcnt lgkmcnt(1)
buffer_store_dwordx4 {vr(P+12,4)}, v{t[7]}, s[{S_WS}:{S_WS+3}], s5 offen {ST}
s_waitcnt lgkmcnt(0)
buffer_store_dwordx4 {vr(P+16,4)}, v{t[7]}, s[{S_WS}:{S_WS+3}], s5 offen offset:1024 {ST}
""")
    if STAMP:
        a("s_add_u32 s3, s3, 4")
    stamp(a, 0, 1, 3, S_WS, 250, 60)
    a.label("K1_END")
    a("s_endpgm")
    return a


def kernel_text(name, a):
    return f""".globl {name}
.p2align 8
.type {name},@function
{name}:
""" + a.text()


def kd(name, vgpr, sgpr=96):
    return f""".p2align 6
.amdhsa_kernel {name}
  .amdhsa_next_free_vgpr {vgpr}
  .amdhsa_next_free_sgpr {sgpr}
  .amdhsa_accum_offset {vgpr}
  .amdhsa_group_segment_fixed_size 0
  .amdhsa_kernarg_size 120
  .amdhsa_user_sgpr_count 2
  .amdhsa_user_sgpr_kernarg_segment_ptr 1
  .amdhsa_system_sgpr_workgroup_id_x 1
  .amdhsa_float_denorm_mode_32 3
.end_amdhsa_kernel
"""


if __name__ == "__main__":
    import gen2
    k1 = gen_k1()
    k2, K2_LDS = gen2.gen_k2(sys.modules[__name__])
    k3 = gen2.gen_k3(sys.modules[__name__])
    hdr = f"""; S4D FFT-conv + LayerNorm + top-1 routed SwiGLU, 3-launch pipeline (generated by work/gen.py)
; @launch kernel=k1_kernel grid=(256,1,1) block=(512,1,1) lds={K1_LDS}
; @launch kernel=k2_kernel grid=(256,1,1) block=(512,1,1) lds={K2_LDS}
; @launch kernel=k3_kernel grid=(288,1,1) block=(256,1,1) lds=4096
.amdgcn_target "amdgcn-amd-amdhsa--gfx950"
.text
"""
    txt = hdr + kernel_text("k1_kernel", k1) + kernel_text("k2_kernel", k2) + kernel_text("k3_kernel", k3)
    txt += '.section .rodata,"a"\n' + kd("k1_kernel", 256) + kd("k2_kernel", 256) + kd("k3_kernel", 64)
    open(OUT, "w").write(txt)
    print("wrote", OUT, len(txt))
```
